```python
import torch

def _softmax(x, axis=-1):
    return torch.softmax(x, dim=axis)
def _gelu(x):
    return torch.nn.functional.gelu(x, approximate="tanh")
def _silu(x):
    return torch.nn.functional.silu(x)
def _sigmoid(x):
    return torch.sigmoid(x)
def _layernorm(x, axis=-1, eps=1e-5):
    m = x.mean(dim=axis, keepdim=True)
    v = x.var(dim=axis, keepdim=True, unbiased=False)
    return (x - m) / torch.sqrt(v + eps)
def _scatter_add(tgt, idx, src, axis=0):
    return tgt.clone().index_add_(axis, idx, src)
def _segment_sum(src, seg, n):
    out = torch.zeros((n,) + src.shape[1:], dtype=src.dtype)
    return out.index_add_(0, seg, src)
def _pad(x, pw):
    flat = tuple(v for pair in reversed(pw) for v in pair)
    return torch.nn.functional.pad(x, flat)

kernel_name = 'standalone__gqa_softmax__near_ridge'

def setup_inputs():

    _w = (lambda a: (lambda t: t.to(torch.bfloat16) if t.is_floating_point() else t)(torch.as_tensor(a)))
    B, Hq, Hkv, Sq, Sk, D = 8, 32, 32, 192, 1024, 128
    return {
        "q": _w((lambda *s: torch.randn(*s, dtype=torch.bfloat16) * 0.8)(B, Hq, Sq, D)),
        "k": _w((lambda *s: torch.randn(*s, dtype=torch.bfloat16) * 0.8)(B, Hkv, Sk, D)),
        "v": _w((lambda *s: torch.randn(*s, dtype=torch.bfloat16) * 0.05)(B, Hkv, Sk, D)),
    }

def reference(q, k, v):
    B, Hq, Sq, D = q.shape
    Hkv = k.shape[1]
    rep = Hq // Hkv
    k = (lambda x, n, axis: torch.repeat_interleave(x, n, dim=axis))(k, rep, axis=1)
    v = (lambda x, n, axis: torch.repeat_interleave(x, n, dim=axis))(v, rep, axis=1)
    scale = D ** -0.5
    scores = torch.einsum("bhqd,bhkd->bhqk", q, k) * scale
    p = _softmax(scores, axis=-1)
    return torch.einsum("bhqk,bhkd->bhqd", p, v)
```

```python
import sys, re, struct, math, argparse

def f32bits(x):
    return struct.unpack("<I", struct.pack("<f", x))[0]

KNAME = "standalone__gqa_softmax__near_ridge_kernel"

V_LANE = 1
V_OFFK = 2
V_OFFV = 6
V_LANEK = 7
V_LANEV = 8
V_NMC = 9
V_THR = 10
V_L = 11
V_M = 12
V_FP = 13
V_MX = 14
V_MX2 = 15
V_AK = 16
V_AV = 24
V_T = 28
V_Q = 32
V_O = 64
V_S = [128, 144]
V_P = [160, 168]
V_KF = 176
V_VF = 208
V_X = 240

S_Q, S_K, S_V, S_O = 12, 16, 20, 24
S_W = 28
S_STEP = 29
S_KSL = 30
S_VSL = 31
S_C = 32
S_NC = 33
S_FLAG = 34
S_KOFF = 36
S_VOFF = 37
S_KDST = 38
S_VDST = 39
S_T0 = 40
S_T1 = 41
S_OR = 42
S_LW = 44
S_SUB = 45
S_QB = 46
S_OB = 47
S_T2 = 48
S_T3 = 49

SLOT = 16384
KRING0 = 0
VRING0 = 5 * SLOT
LDS_TOTAL = 10 * SLOT

C_SCALE = (128 ** -0.5) * math.log2(math.e)


def vr(a, n=1):
    return f"v{a}" if n == 1 else f"v[{a}:{a+n-1}]"


def sr(a, n=1):
    return f"s{a}" if n == 1 else f"s[{a}:{a+n-1}]"


class G:
    def __init__(self, opt):
        self.o = opt
        self.lines = []
        self.dsq = []
        self.nrare = 0
        self.rare_blocks = []

    def e(self, s):
        self.lines.append("    " + s)

    def L(self, s):
        self.lines.append(s + ":")

    def c(self, s):
        self.lines.append("    ; " + s)

    def ds(self, text, tag):
        self.e(text)
        self.dsq.append(tag)

    def wait_ds(self, tags):
        last = -1
        for i, t in enumerate(self.dsq):
            if t in tags:
                last = i
        if last < 0:
            return
        n = len(self.dsq) - 1 - last
        assert n <= 15, n
        self.e(f"s_waitcnt lgkmcnt({n})")
        self.dsq = self.dsq[last + 1:]

    def wait_ds_all(self, extra=""):
        self.e(f"s_waitcnt {extra}lgkmcnt(0)")
        self.dsq = []

    def mfma(self, d, a, b, first=False):
        cc = "0" if first else vr(d, 16)
        return f"v_mfma_f32_32x32x16_bf16 {vr(d,16)}, {vr(a,4)}, {vr(b,4)}, {cc}"

    def softmax_ops(self, S, P):
        ops = []
        F = lambda r: (f"v_fma_f32 {vr(S+r)}, {vr(S+r)}, {sr(S_C)}, {vr(V_NMC)}", 1)
        E = lambda r: (f"v_exp_f32 {vr(S+r)}, {vr(S+r)}", 2)
        A = lambda r: (f"v_add_f32 {vr(V_L)}, {vr(V_L)}, {vr(S+r)}", 1)
        Cv = lambda i: (f"v_cvt_pk_bf16_f32 {vr(P+i)}, {vr(S+2*i)}, {vr(S+2*i+1)}", 1)
        ops += [F(0), F(1)]
        for i in range(0, 9):
            if i <= 7:
                ops.append(E(2 * i))
                if i + 1 <= 7:
                    ops.append(F(2 * i + 2))
                ops.append(E(2 * i + 1))
                if i + 1 <= 7:
                    ops.append(F(2 * i + 3))
            if i - 1 >= 0:
                ops += [A(2 * i - 2), A(2 * i - 1), Cv(i - 1)]
        return ops

    def max_ops(self, S):
        m, m2 = vr(V_MX), vr(V_MX2)
        s = lambda r: vr(S + r)
        return [
            (f"v_max3_f32 {m}, {s(0)}, {s(1)}, {s(2)}", 1),
            (f"v_max3_f32 {m2}, {s(3)}, {s(4)}, {s(5)}", 1),
            (f"v_max3_f32 {m}, {m}, {s(6)}, {s(7)}", 1),
            (f"v_max3_f32 {m2}, {m2}, {s(8)}, {s(9)}", 1),
            (f"v_max3_f32 {m}, {m}, {s(10)}, {s(11)}", 1),
            (f"v_max3_f32 {m2}, {m2}, {s(12)}, {s(13)}", 1),
            (f"v_max3_f32 {m}, {m}, {s(14)}, {s(15)}", 1),
            (f"v_max_f32 {m}, {m}, {m2}", 1),
            (f"v_cmp_gt_f32 vcc, {m}, {vr(V_THR)}", 1),
        ]

    def kaddr_ops(self, sbase):
        ops = [(f"v_add_u32 {vr(V_AK)}, {sbase}, {vr(V_LANEK)}", 1)]
        for kk in range(1, 8):
            ops.append((f"v_xor_b32 {vr(V_AK+kk)}, {kk<<5}, {vr(V_AK)}", 1))
        return ops

    def vaddr_ops(self, sbase):
        ops = [(f"v_add_u32 {vr(V_AV)}, {sbase}, {vr(V_LANEV)}", 1)]
        for db in range(1, 4):
            ops.append((f"v_xor_b32 {vr(V_AV+db)}, {db<<6}, {vr(V_AV)}", 1))
        return ops

    def adv_kslot(self):
        return [f"s_add_u32 {sr(S_KSL)}, {sr(S_KSL)}, {SLOT}",
                f"s_cmp_eq_u32 {sr(S_KSL)}, {KRING0+5*SLOT}",
                f"s_cselect_b32 {sr(S_KSL)}, {KRING0}, {sr(S_KSL)}"]

    def adv_vslot(self):
        return [f"s_add_u32 {sr(S_VSL)}, {sr(S_VSL)}, {SLOT}",
                f"s_cmp_eq_u32 {sr(S_VSL)}, {VRING0+5*SLOT}",
                f"s_cselect_b32 {sr(S_VSL)}, {VRING0}, {sr(S_VSL)}"]

    def kread(self, kk, dst, off):
        o = f" offset:{off}" if off else ""
        return (f"ds_read_b128 {vr(dst+4*kk,4)}, {vr(V_AK+kk)}{o}", ("K", dst, kk))

    def vread(self, i, u, dst, off):
        jj, db = i >> 2, i & 3
        o = off + (16 * jj + 8 * u) * 256
        os_ = f" offset:{o}" if o else ""
        return (f"ds_read_b64_tr_b16 {vr(dst+4*i+2*u,2)}, {vr(V_AV+db)}{os_}", ("V", dst, i))

    def rare_site(self, kind):
        k = self.nrare
        self.nrare += 1
        lab, ret = f"L_rare{k}", f"L_ret{k}"
        if kind == "AB":
            self.e(f"s_or_b64 {sr(S_OR,2)}, vcc, {sr(S_FLAG,2)}")
            self.e(f"s_cbranch_scc1 {lab}")
        elif kind == "A":
            self.e(f"s_cbranch_vccnz {lab}")
        else:
            self.e(f"s_cmp_lg_u64 {sr(S_FLAG,2)}, 0")
            self.e(f"s_cbranch_scc1 {lab}")
        self.L(ret)
        self.rare_blocks.append((lab, ret, kind))

    def emit_rare_blocks(self):
        for lab, ret, kind in self.rare_blocks:
            self.L(lab)
            if kind in ("AB", "B"):
                if kind == "AB":
                    self.e(f"s_cmp_eq_u64 {sr(S_FLAG,2)}, 0")
                    self.e(f"s_cbranch_scc1 {lab}_a")
                self.e("s_nop 15")
                self.e("s_nop 3")
                for r in range(64):
                    self.e(f"v_mul_f32 {vr(V_O+r)}, {vr(V_FP)}, {vr(V_O+r)}")
                self.e(f"s_mov_b64 {sr(S_FLAG,2)}, 0")
                if kind == "AB":
                    self.e(f"s_cbranch_vccz {lab}_x")
                    self.L(f"{lab}_a")
            if kind in ("AB", "A"):
                m, m2 = vr(V_MX), vr(V_MX2)
                self.e(f"v_mov_b32 {m2}, {m}")
                self.e("s_nop 1")
                self.e(f"v_permlane32_swap_b32 {m}, {m2}")
                self.e("s_nop 1")
                self.e(f"v_max3_f32 {m}, {m}, {m2}, {vr(V_M)}")
                self.e(f"v_sub_f32 {m2}, {vr(V_M)}, {m}")
                self.e(f"v_mul_f32 {m2}, {sr(S_C)}, {m2}")
                self.e(f"v_exp_f32 {vr(V_FP)}, {m2}")
                self.e(f"v_mov_b32 {vr(V_M)}, {m}")
                self.e(f"v_mul_f32 {vr(V_NMC)}, {sr(S_NC)}, {m}")
                self.e(f"v_add_f32 {vr(V_THR)}, 0x{f32bits(self.o.thr/C_SCALE):08x}, {m}")
                self.e(f"v_mul_f32 {vr(V_L)}, {vr(V_FP)}, {vr(V_L)}")
                self.e(f"s_mov_b64 {sr(S_FLAG,2)}, 1")
            self.L(f"{lab}_x")
            self.e("s_nop 1")
            self.e(f"s_branch {ret}")

    def distribute(self, mf, valu, fixed, first_gap=0, last_gap=None):
        n = len(mf)
        if last_gap is None:
            last_gap = n - 1
        ng = last_gap - first_gap + 1
        tot = sum(c for _, c in valu)
        idx = 0
        cum = 0
        for g in range(n):
            text, wt = mf[g]
            if wt:
                self.wait_ds(wt)
            self.e(text)
            for it in fixed.get(g, []):
                self.fixed_item(it)
            if first_gap <= g <= last_gap:
                target = tot * (g - first_gap + 1) / ng
                while idx < len(valu) and (cum + valu[idx][1] * 0.5 <= target or g == last_gap):
                    self.e(valu[idx][0])
                    cum += valu[idx][1]
                    idx += 1
            for it in fixed.get(("post", g), []):
                self.fixed_item(it)
        assert idx == len(valu)

    def fixed_item(self, it):
        if it[0] == "ds":
            self.ds(it[1], it[2])
        elif it[0] == "raw":
            self.e(it[1])
        elif it[0] == "bar":
            self.wait_ds_all()
            self.e("s_barrier")

    def slot_full(self, p, qk=True, pv=True, bar=False, kread=True, upd_k=False, upd_v=False, kf=V_KF):
        self.c(f"---- full slot p={p} qk={qk} pv={pv} bar={bar} kread={kread}")
        mf = []
        fixed = {}
        if qk:
            for kk in range(8):
                wt = None
                if kk == 0:
                    wt = [("K", kf, x) for x in range(4)]
                if kk == 4:
                    wt = [("K", kf, x) for x in range(4, 8)]
                mf.append((self.mfma(V_S[1 - p], kf + 4 * kk, V_Q + 4 * kk, first=(kk == 0)), wt))
        nq = len(mf)
        if pv:
            for i in range(8):
                jj, db = i >> 2, i & 3
                wt = None
                if i == 0:
                    wt = [("V", V_VF, x) for x in range(4)]
                if i == 4:
                    wt = [("V", V_VF, x) for x in range(4, 8)]
                mf.append((self.mfma(V_O + 16 * db, V_VF + 4 * i, V_P[1 - p] + 4 * jj), wt))
            assert qk
            for i in range(8):
                fixed.setdefault(i, [])
                for u in range(2):
                    t, tag = self.vread(i, u, V_VF, (1 - p) * 8192)
                    fixed[i].append(("ds", t, tag))
        n = len(mf)
        if pv:
            kg = [10, 10, 11, 11, 12, 13, 14, 15]
            bar_gap = 10
        else:
            kg = [7] * 8
            bar_gap = 7
        valu = []
        pre = []
        if upd_k:
            fixed.setdefault(0, [])
            fixed[0] = [("raw", t) for t in self.adv_kslot()] + fixed[0]
            valu += self.kaddr_ops(sr(S_KSL))
        sm = self.softmax_ops(V_S[p], V_P[p])
        valu += sm
        if upd_v:
            fixed.setdefault(8 if pv else 7, [])
            vops = self.vaddr_ops(sr(S_VSL))
        mx = self.max_ops(V_S[1 - p]) if qk else []
        if pv:
            if upd_v:
                fixed[8] = fixed[8] + [("raw", t) for t in self.adv_vslot()]
                valu += vops
            valu += mx
            if bar:
                fixed.setdefault(bar_gap, [])
                fixed[bar_gap].append(("bar",))
            if kread:
                for kk in range(8):
                    t, tag = self.kread(kk, V_KF, p * 8192)
                    fixed.setdefault(kg[kk], []).append(("ds", t, tag))
            self.distribute(mf, valu, fixed)
        else:
            half = len(valu) * 45 // 100
            self.distribute(mf, valu[:half], fixed)
            if bar:
                self.fixed_item(("bar",))
            if kread:
                for kk in range(8):
                    t, tag = self.kread(kk, V_KF, p * 8192)
                    self.ds(t, tag)
            rest = valu[half:]
            if upd_v:
                rest += vops
            rest += mx
            for t, _ in rest:
                self.e(t)

    def dma_k(self):
        nt = self.o.ldflags
        self.e(f"s_mov_b32 m0, {sr(S_KDST)}")
        self.e(f"s_add_u32 {sr(S_KDST)}, {sr(S_KDST)}, {SLOT}")
        for p in range(4):
            o = f" offset:{p*1024}" if p else ""
            self.e(f"buffer_load_dwordx4 {vr(V_OFFK+p)}, {sr(S_K,4)}, {sr(S_KOFF)} offen{o}{nt} lds")
        self.e(f"s_add_u32 {sr(S_KOFF)}, {sr(S_KOFF)}, {SLOT}")
        self.e(f"s_and_b32 {sr(S_KOFF)}, {sr(S_KOFF)}, 0x3ffff")
        self.e(f"s_sub_u32 {sr(S_T0)}, {sr(S_KDST)}, {5*SLOT}")
        self.e(f"s_cmp_ge_u32 {sr(S_KDST)}, {KRING0+5*SLOT}")
        self.e(f"s_cselect_b32 {sr(S_KDST)}, {sr(S_T0)}, {sr(S_KDST)}")

    def dma_v(self):
        nt = self.o.ldflags
        self.e(f"s_mov_b32 m0, {sr(S_VDST)}")
        self.e(f"s_add_u32 {sr(S_VDST)}, {sr(S_VDST)}, {SLOT}")
        for p in range(4):
            o = f" offset:{p*1024}" if p else ""
            self.e(f"buffer_load_dwordx4 {vr(V_OFFV)}, {sr(S_V,4)}, {sr(S_VOFF)} offen{o}{nt} lds")
        self.e(f"s_add_u32 {sr(S_VOFF)}, {sr(S_VOFF)}, {SLOT}")
        self.e(f"s_and_b32 {sr(S_VOFF)}, {sr(S_VOFF)}, 0x3ffff")
        self.e(f"s_sub_u32 {sr(S_T0)}, {sr(S_VDST)}, {5*SLOT}")
        self.e(f"s_cmp_ge_u32 {sr(S_VDST)}, {VRING0+5*SLOT}")
        self.e(f"s_cselect_b32 {sr(S_VDST)}, {sr(S_T0)}, {sr(S_VDST)}")

    def dma_q(self, sdst, soff):
        nt = self.o.ldflags
        self.e(f"s_mov_b32 m0, {sdst}")
        self.e("s_nop 0")
        for p in range(4):
            o = f" offset:{p*1024}" if p else ""
            self.e(f"buffer_load_dwordx4 {vr(V_OFFK+p)}, {sr(S_Q,4)}, {soff} offen{o}{nt} lds")

    def init_state(self):
        for r in range(64):
            self.e(f"v_mov_b32 {vr(V_O+r)}, 0")
        self.e(f"v_mov_b32 {vr(V_M)}, 0x{f32bits(-3.0e38):08x}")
        self.e(f"v_mov_b32 {vr(V_THR)}, 0x{f32bits(-3.0e38):08x}")
        self.e(f"v_mov_b32 {vr(V_NMC)}, 0")
        self.e(f"v_mov_b32 {vr(V_L)}, 0")
        self.e(f"v_mov_b32 {vr(V_FP)}, 0")
        self.e(f"s_mov_b64 {sr(S_FLAG,2)}, 0")

    def read_q(self, sqaddr):
        for t, _ in self.kaddr_ops(sqaddr):
            self.e(t)
        for kk in range(8):
            t, tag = self.kread(kk, V_Q, 0)
            self.ds(t, tag)

    def lsum(self):
        self.e(f"v_mov_b32 {vr(V_T)}, {vr(V_L)}")
        self.e("s_nop 1")
        self.e(f"v_permlane32_swap_b32 {vr(V_L)}, {vr(V_T)}")
        self.e("s_nop 1")
        self.e(f"v_add_f32 {vr(V_L)}, {vr(V_L)}, {vr(V_T)}")

    def pack_write(self, tiles, scale_reg, tmp):
        q = 0
        for t in tiles:
            for gp in range(2):
                base = V_O + 16 * t + 8 * gp
                T = tmp + 4 * (q & 1)
                q += 1
                if scale_reg is not None:
                    for r in range(8):
                        self.e(f"v_mul_f32 {vr(base+r)}, {vr(scale_reg)}, {vr(base+r)}")
                for i in range(4):
                    self.e(f"v_cvt_pk_bf16_f32 {vr(T+i)}, {vr(base+2*i)}, {vr(base+2*i+1)}")
                self.e("s_nop 1")
                self.e(f"v_permlane32_swap_b32 {vr(T)}, {vr(T+2)}")
                self.e(f"v_permlane32_swap_b32 {vr(T+1)}, {vr(T+3)}")
                self.e("s_nop 0")
                self.ds(f"ds_write_b128 {vr(V_AK+2*t+gp)}, {vr(T,4)}", ("W", t, gp))

    def build(self):
        o = self.o
        e = self.e
        hdr = open("standalone__gqa_softmax__near_ridge.s.ref").read().split("\n")
        for ln in hdr:
            if ln.startswith("; @launch"):
                break
            self.lines.append(ln)
        self.lines.append(f"; @launch grid=(256,1,1) block=(512,1,1) lds={LDS_TOTAL}")
        self.lines.append('.amdgcn_target "amdgcn-amd-amdhsa--gfx950"')
        self.lines.append(".text")
        self.lines.append(f".globl {KNAME}")
        self.lines.append(".p2align 8")
        self.lines.append(f".type {KNAME},@function")
        self.L(KNAME)
        e("s_cmp_ge_u32 s2, 256")
        e("s_cbranch_scc1 L_end")
        e("s_load_dwordx8 s[4:11], s[0:1], 0")
        e(f"v_lshrrev_b32 {vr(V_T)}, 6, v0")
        e(f"v_and_b32 {vr(V_LANE)}, 63, v0")
        e(f"v_readfirstlane_b32 {sr(S_W)}, {vr(V_T)}")
        e(f"v_lshrrev_b32 {vr(V_T)}, 4, {vr(V_LANE)}")
        e(f"v_and_b32 {vr(V_T+1)}, 15, {vr(V_LANE)}")
        e(f"v_xor_b32 {vr(V_T+2)}, {vr(V_T+1)}, {vr(V_T)}")
        e(f"v_lshlrev_b32 {vr(V_T+2)}, 4, {vr(V_T+2)}")
        e(f"v_lshl_add_u32 {vr(V_OFFK)}, {vr(V_T)}, 8, {vr(V_T+2)}")
        for p in range(1, 4):
            e(f"v_xor_b32 {vr(V_OFFK+p)}, {p<<6}, {vr(V_OFFK)}")
        e(f"v_lshlrev_b32 {vr(V_T+2)}, 2, {vr(V_T)}")
        e(f"v_xor_b32 {vr(V_T+2)}, {vr(V_T+1)}, {vr(V_T+2)}")
        e(f"v_lshlrev_b32 {vr(V_T+2)}, 4, {vr(V_T+2)}")
        e(f"v_lshl_add_u32 {vr(V_OFFV)}, {vr(V_T)}, 8, {vr(V_T+2)}")
        e(f"s_mul_i32 {sr(S_T0)}, s2, 49152")
        e(f"s_lshl_b32 {sr(S_T1)}, s2, 18")
        e(f"s_sub_u32 {sr(S_LW)}, {sr(S_W)}, 4")
        e(f"s_and_b32 {sr(S_SUB)}, {sr(S_W)}, 1")
        e(f"s_lshr_b32 {sr(S_QB)}, {sr(S_LW)}, 1")
        e(f"s_add_u32 {sr(S_QB)}, {sr(S_QB)}, 4")
        e(f"s_cmp_lt_u32 {sr(S_W)}, 4")
        e(f"s_cselect_b32 {sr(S_QB)}, {sr(S_W)}, {sr(S_QB)}")
        e(f"s_cselect_b32 {sr(S_SUB)}, 0, {sr(S_SUB)}")
        e(f"s_mov_b32 {sr(S_C)}, 0x{f32bits(C_SCALE):08x}")
        e(f"s_mov_b32 {sr(S_NC)}, 0x{f32bits(-C_SCALE):08x}")
        e(f"s_lshl_b32 {sr(S_T2)}, {sr(S_QB)}, 13")
        e(f"s_add_u32 {sr(S_T3)}, {sr(S_T2)}, {4*SLOT}")
        e(f"s_add_u32 {sr(S_OB)}, {sr(S_T2)}, {VRING0+3*SLOT-2*8192}")
        e(f"s_cmp_lt_u32 {sr(S_QB)}, 2")
        e(f"s_cselect_b32 {sr(S_T3)}, {sr(S_T3)}, {sr(S_OB)}")
        e("s_waitcnt lgkmcnt(0)")
        for (srd, ptr, off, nrec) in ((S_Q, 4, S_T0, 49152), (S_K, 6, S_T1, 262144), (S_V, 8, S_T1, 262144), (S_O, 10, S_T0, 49152)):
            e(f"s_add_u32 {sr(srd)}, {sr(ptr)}, {sr(off)}")
            e(f"s_addc_u32 {sr(srd+1)}, {sr(ptr+1)}, 0")
            e(f"s_mov_b32 {sr(srd+2)}, {nrec}")
            e(f"s_mov_b32 {sr(srd+3)}, 0x00020000")
        e(f"s_cmp_ge_u32 {sr(S_W)}, 4")
        e("s_cbranch_scc1 L_half")

        self.c("=========== full waves (0..3) ===========")
        self.dma_q(sr(S_T3), sr(S_T2))
        e(f"s_add_u32 {sr(S_T0)}, {sr(S_T3)}, 4096")
        e(f"s_add_u32 {sr(S_T1)}, {sr(S_T2)}, 4096")
        self.dma_q(sr(S_T0), sr(S_T1))
        self.lane_consts(half=False)
        self.init_state()
        e(f"s_mov_b32 {sr(S_KSL)}, {KRING0}")
        e(f"s_mov_b32 {sr(S_VSL)}, {VRING0}")
        if o.prio_full:
            e(f"s_setprio {o.prio_full}")
        e("s_waitcnt vmcnt(0)")
        e("s_barrier")
        self.read_q(sr(S_T3))
        for t, _ in self.kaddr_ops(sr(S_KSL)):
            e(t)
        for kk in range(8):
            t, tag = self.kread(kk, V_KF, 0)
            self.ds(t, tag)
        for kk in range(8):
            if kk % 2 == 0:
                self.wait_ds([("K", V_KF, kk + 1)])
            e(self.mfma(V_S[0], V_KF + 4 * kk, V_Q + 4 * kk, first=(kk == 0)))
            t, tag = self.kread(kk, V_VF, 8192)
            self.ds(t, tag)
        e("s_nop 15")
        for t, _ in self.max_ops(V_S[0]):
            e(t)
        self.rare_site("AB")
        self.slot_full(0, qk=True, pv=False, bar=True, kread=True, upd_k=True, upd_v=True, kf=V_VF)
        self.rare_site("AB")
        e(f"s_mov_b32 {sr(S_STEP)}, 1")
        entry_q = list(self.dsq)
        self.lines.append(".p2align 6")
        self.L("L_floop")
        self.slot_full(1)
        self.rare_site("AB")
        self.slot_full(0, bar=True, upd_k=True, upd_v=True)
        e(f"s_add_u32 {sr(S_STEP)}, {sr(S_STEP)}, 1")
        self.rare_site("AB")
        e(f"s_cmp_lt_u32 {sr(S_STEP)}, 15")
        e("s_cbranch_scc1 L_floop")
        assert self.dsq == entry_q, (self.dsq, entry_q)
        self.slot_full(1)
        self.rare_site("AB")
        self.slot_full(0, kread=False, upd_v=True)
        self.rare_site("AB")
        self.c("---- slot 31': softmax only")
        for t, _ in self.softmax_ops(V_S[1], V_P[1]):
            e(t)
        self.lsum()
        e(f"v_rcp_f32 {vr(V_X)}, {vr(V_L)}")
        e(f"s_lshl_b32 {sr(S_OB)}, {sr(S_W)}, 13")
        for t, _ in self.kaddr_ops(sr(S_OB)):
            e(t)
        for p in range(4):
            e(f"v_add_u32 {vr(V_OFFK+p)}, {sr(S_OB)}, {vr(V_OFFK+p)}")
        e(f"v_lshlrev_b32 {vr(V_X+1)}, 4, {vr(V_LANE)}")
        e(f"s_add_u32 {sr(S_T3)}, {sr(S_T2)}, 4096")
        self.wait_ds_all()
        e("s_barrier")
        for i in range(8):
            for u in range(2):
                t, tag = self.vread(i, u, V_VF, 0)
                self.ds(t, tag)
        for i in range(8):
            jj, db = i >> 2, i & 3
            if i % 2 == 0:
                self.wait_ds([("V", V_VF, i + 1)])
            e(self.mfma(V_O + 16 * db, V_VF + 4 * i, V_P[0] + 4 * jj))
            for u in range(2):
                t, tag = self.vread(i, u, V_KF, 8192)
                self.ds(t, tag)
        self.rare_site("B")
        for i in range(8):
            jj, db = i >> 2, i & 3
            if i % 4 == 0:
                self.wait_ds([("V", V_KF, i + 3)])
            e(self.mfma(V_O + 16 * db, V_KF + 4 * i, V_P[1] + 4 * jj))
        e("s_barrier")
        e("s_nop 7")
        self.pack_write([0, 1, 2, 3], V_X, V_S[0])
        self.wait_ds_all()
        for i in range(8):
            p = i & 3
            self.ds(f"ds_read_b128 {vr(V_KF+4*i,4)}, {vr(V_OFFK+p)} offset:{p*1024+(i>>2)*4096}", ("R", i))
        for i in range(8):
            p = i & 3
            self.wait_ds([("R", i)])
            so = sr(S_T2) if i < 4 else sr(S_T3)
            oo = f" offset:{p*1024}" if p else ""
            e(f"buffer_store_dwordx4 {vr(V_KF+4*i,4)}, {vr(V_X+1)}, {sr(S_O,4)}, {so} offen{oo}{o.stflags}")
        e("s_endpgm")

        self.dsq = []
        self.L("L_half")
        self.c("=========== half waves (4..7): loaders ===========")
        e(f"s_lshl_b32 {sr(S_T0)}, {sr(S_SUB)}, 12")
        e(f"s_add_u32 {sr(S_T1)}, {sr(S_T2)}, {sr(S_T0)}")
        e(f"s_add_u32 {sr(S_T0)}, {sr(S_T3)}, {sr(S_T0)}")
        self.dma_q(sr(S_T0), sr(S_T1))
        e(f"s_lshl_b32 {sr(S_KDST)}, {sr(S_LW)}, 12")
        e(f"s_add_u32 {sr(S_VDST)}, {sr(S_KDST)}, {VRING0}")
        if o.rot:
            e(f"s_lshr_b32 {sr(S_KOFF)}, s2, {o.rot_shift}")
            e(f"s_and_b32 {sr(S_KOFF)}, {sr(S_KOFF)}, 15")
            e(f"s_lshl_b32 {sr(S_KOFF)}, {sr(S_KOFF)}, 14")
            e(f"s_add_u32 {sr(S_KOFF)}, {sr(S_KOFF)}, {sr(S_KDST)}")
        else:
            e(f"s_mov_b32 {sr(S_KOFF)}, {sr(S_KDST)}")
        e(f"s_mov_b32 {sr(S_VOFF)}, {sr(S_KOFF)}")
        self.dma_k(); self.dma_k(); self.dma_v(); self.dma_k(); self.dma_v(); self.dma_k(); self.dma_v()
        self.lane_consts(half=True)
        self.init_state()
        e(f"s_mov_b32 {sr(S_KSL)}, {KRING0}")
        e(f"s_mov_b32 {sr(S_VSL)}, {VRING0+4*SLOT}")
        if o.prio_half:
            e(f"s_setprio {o.prio_half}")
        e(f"s_lshl_b32 {sr(S_T0)}, {sr(S_SUB)}, 13")
        e(f"s_sub_u32 {sr(S_T3)}, {sr(S_T3)}, {sr(S_T0)}")
        e("s_waitcnt vmcnt(24)")
        e("s_barrier")
        self.read_q(sr(S_T3))
        for t, _ in self.kaddr_ops(sr(S_KSL)):
            e(t)
        for kk in range(8):
            t, tag = self.kread(kk, V_KF, 0)
            self.ds(t, tag)
        for kk in range(8):
            if kk % 2 == 0:
                self.wait_ds([("K", V_KF, kk + 1)])
            e(self.mfma(V_S[0], V_KF + 4 * kk, V_Q + 4 * kk, first=(kk == 0)))
        e("s_nop 15")
        for t, _ in self.max_ops(V_S[0]):
            e(t)
        self.rare_site("A")
        for t, _ in self.softmax_ops(V_S[0], V_P[0]):
            e(t)
        self.rare_site("B")
        e(f"s_mov_b32 {sr(S_STEP)}, 1")
        e("s_waitcnt vmcnt(16)")
        e("s_barrier")
        self.dma_k(); self.dma_v()
        e("s_branch L_hab")
        self.lines.append(".p2align 6")
        self.L("L_htop")
        e("s_barrier")
        self.L("L_hab")
        assert not self.dsq
        for t in self.adv_kslot():
            e(t)
        for t, _ in self.kaddr_ops(sr(S_KSL)):
            e(t)
        for kk in range(8):
            t, tag = self.kread(kk, V_KF, 0)
            self.ds(t, tag)
        for t in self.adv_vslot():
            e(t)
        for t, _ in self.vaddr_ops(sr(S_VSL)):
            e(t)
        e(f"s_cmp_gt_u32 {sr(S_STEP)}, 11")
        e("s_cbranch_scc1 L_hnok")
        self.dma_k()
        self.L("L_hnok")
        e(f"s_cmp_gt_u32 {sr(S_STEP)}, 12")
        e("s_cbranch_scc1 L_hnov")
        self.dma_v()
        self.L("L_hnov")
        for kk in range(8):
            if kk % 4 == 0:
                self.wait_ds([("K", V_KF, kk + 3)])
            e(self.mfma(V_S[0], V_KF + 4 * kk, V_Q + 4 * kk, first=(kk == 0)))
            for u in range(2):
                t, tag = self.vread(kk, u, V_VF, 0)
                self.ds(t, tag)
        pvm = []
        for i in range(8):
            jj, db = i >> 2, i & 3
            wt = None
            if i % 4 == 0:
                wt = [("V", V_VF, x) for x in range(i, i + 4)]
            pvm.append((self.mfma(V_O + 16 * db, V_VF + 4 * i, V_P[0] + 4 * jj), wt))
        for t, wt in pvm[:3]:
            if wt:
                self.wait_ds(wt)
            e(t)
        e("s_nop 8")
        mx = self.max_ops(V_S[0])
        for t, _ in mx[:4]:
            e(t)
        e(pvm[3][0])
        for t, _ in mx[4:]:
            e(t)
        self.rare_site("A")
        sm = self.softmax_ops(V_S[0], V_P[0])
        idx_p4 = [i for i, (t, _) in enumerate(sm) if t.startswith(f"v_cvt_pk_bf16_f32 {vr(V_P[0]+4)},")][0]
        self.distribute(pvm[4:], sm[:24], {})
        assert idx_p4 >= 24
        for t, _ in sm[24:]:
            e(t)
        self.rare_site("B")
        e(f"s_cmp_lt_u32 {sr(S_STEP)}, 12")
        e("s_cbranch_scc0 L_htw")
        e(f"s_add_u32 {sr(S_STEP)}, {sr(S_STEP)}, 1")
        e("s_waitcnt vmcnt(24)")
        e("s_branch L_htop")
        self.L("L_htw")
        e(f"s_add_u32 {sr(S_STEP)}, {sr(S_STEP)}, 1")
        e(f"s_cmp_eq_u32 {sr(S_STEP)}, 13")
        e("s_cbranch_scc0 L_htw2")
        e("s_waitcnt vmcnt(20)")
        e("s_branch L_htop")
        self.L("L_htw2")
        e(f"s_cmp_eq_u32 {sr(S_STEP)}, 14")
        e("s_cbranch_scc0 L_htw3")
        e("s_waitcnt vmcnt(12)")
        e("s_branch L_htop")
        self.L("L_htw3")
        e(f"s_cmp_eq_u32 {sr(S_STEP)}, 15")
        e("s_cbranch_scc0 L_hfin")
        e("s_waitcnt vmcnt(4)")
        e("s_branch L_htop")
        self.L("L_hfin")
        XML = VRING0 + 3 * SLOT
        XO = VRING0 + 1 * SLOT
        self.lsum()
        e(f"v_lshlrev_b32 {vr(V_X+1)}, 3, {vr(V_LANE)}")
        e(f"s_lshl_b32 {sr(S_T0)}, {sr(S_LW)}, 9")
        e(f"s_add_u32 {sr(S_T0)}, {sr(S_T0)}, {XML}")
        e(f"s_xor_b32 {sr(S_T1)}, {sr(S_T0)}, 512")
        e(f"v_add_u32 {vr(V_X+2)}, {sr(S_T0)}, {vr(V_X+1)}")
        e(f"v_add_u32 {vr(V_X+3)}, {sr(S_T1)}, {vr(V_X+1)}")
        e(f"v_mov_b32 {vr(V_X+4)}, {vr(V_NMC)}")
        e(f"v_mov_b32 {vr(V_X+5)}, {vr(V_L)}")
        self.ds(f"ds_write_b64 {vr(V_X+2)}, {vr(V_X+4,2)}", ("XW",))
        for t in self.adv_vslot():
            e(t)
        for t, _ in self.vaddr_ops(sr(S_VSL)):
            e(t)
        e(f"v_lshlrev_b32 {vr(V_X+1)}, 4, {vr(V_LANE)}")
        e(f"s_lshl_b32 {sr(S_T0)}, {sr(S_LW)}, 13")
        e(f"s_add_u32 {sr(S_T0)}, {sr(S_T0)}, {XO}")
        e(f"s_xor_b32 {sr(S_T1)}, {sr(S_T0)}, 8192")
        e(f"v_add_u32 {vr(V_X+8)}, {sr(S_T0)}, {vr(V_X+1)}")
        e(f"v_add_u32 {vr(V_X+9)}, {sr(S_T1)}, {vr(V_X+1)}")
        e(f"s_lshl_b32 {sr(S_OB)}, {sr(S_W)}, 13")
        e(f"s_lshl_b32 {sr(S_T0)}, {sr(S_SUB)}, 13")
        e(f"s_sub_u32 {sr(S_T0)}, {sr(S_OB)}, {sr(S_T0)}")
        for t, _ in self.kaddr_ops(sr(S_T0))[:4]:
            e(t)
        e(f"v_lshrrev_b32 {vr(V_T)}, 3, {vr(V_LANE)}")
        e(f"v_and_b32 {vr(V_T+1)}, 7, {vr(V_LANE)}")
        e(f"v_xor_b32 {vr(V_T+2)}, {vr(V_T+1)}, {vr(V_T)}")
        e(f"v_lshlrev_b32 {vr(V_T+2)}, 4, {vr(V_T+2)}")
        e(f"v_lshl_add_u32 {vr(V_X+10)}, {vr(V_T)}, 8, {vr(V_T+2)}")
        e(f"v_add_u32 {vr(V_X+10)}, {sr(S_OB)}, {vr(V_X+10)}")
        e(f"v_xor_b32 {vr(V_X+11)}, 0x80, {vr(V_X+10)}")
        e(f"v_lshlrev_b32 {vr(V_T+1)}, 4, {vr(V_T+1)}")
        e(f"v_lshl_add_u32 {vr(V_X+12)}, {vr(V_T)}, 8, {vr(V_T+1)}")
        e(f"s_lshl_b32 {sr(S_T0)}, {sr(S_SUB)}, 7")
        e(f"v_add_u32 {vr(V_X+12)}, {sr(S_T0)}, {vr(V_X+12)}")
        e(f"s_add_u32 {sr(S_T3)}, {sr(S_T2)}, 4096")
        self.wait_ds_all("vmcnt(0) ")
        e("s_barrier")
        self.ds(f"ds_read_b64 {vr(V_X+6,2)}, {vr(V_X+3)}", ("XR",))
        for i in range(8):
            for u in range(2):
                t, tag = self.vread(i, u, V_VF, 0)
                self.ds(t, tag)
        pvm = []
        for i in range(8):
            jj, db = i >> 2, i & 3
            wt = None
            if i % 2 == 0:
                wt = [("V", V_VF, i + 1)]
            pvm.append((self.mfma(V_O + 16 * db, V_VF + 4 * i, V_P[0] + 4 * jj), wt))
        fac = [
            (f"v_min_f32 {vr(V_T)}, {vr(V_NMC)}, {vr(V_X+6)}", 1),
            (f"v_sub_f32 {vr(V_T+1)}, {vr(V_T)}, {vr(V_NMC)}", 1),
            (f"v_sub_f32 {vr(V_T+2)}, {vr(V_T)}, {vr(V_X+6)}", 1),
            (f"v_exp_f32 {vr(V_T+1)}, {vr(V_T+1)}", 2),
            (f"v_exp_f32 {vr(V_T+2)}, {vr(V_T+2)}", 2),
            (f"s_nop 0", 1),
            (f"v_mul_f32 {vr(V_T+3)}, {vr(V_T+1)}, {vr(V_L)}", 1),
            (f"v_fma_f32 {vr(V_T+3)}, {vr(V_T+2)}, {vr(V_X+7)}, {vr(V_T+3)}", 1),
            (f"v_rcp_f32 {vr(V_T+3)}, {vr(V_T+3)}", 2),
            (f"s_nop 0", 1),
            (f"v_mul_f32 {vr(V_X)}, {vr(V_T+1)}, {vr(V_T+3)}", 1),
        ]
        self.distribute(pvm, fac, {}, first_gap=1, last_gap=5)
        e("s_nop 15")
        for i in range(8):
            base = V_O + 32 + 4 * i
            for r in range(4):
                e(f"v_mul_f32 {vr(base+r)}, {vr(V_X)}, {vr(base+r)}")
            self.ds(f"ds_write_b128 {vr(V_X+8)}, {vr(base,4)} offset:{i*1024}", ("XO", i))
        for r in range(32):
            e(f"v_mul_f32 {vr(V_O+r)}, {vr(V_X)}, {vr(V_O+r)}")
        self.wait_ds_all()
        e("s_barrier")
        for i in range(8):
            self.ds(f"ds_read_b128 {vr(V_KF+4*i,4)}, {vr(V_X+9)} offset:{i*1024}", ("XI", i))
        for i in range(8):
            if i % 2 == 0:
                self.wait_ds([("XI", i + 1)])
            for r in range(4):
                e(f"v_add_f32 {vr(V_O+4*i+r)}, {vr(V_O+4*i+r)}, {vr(V_KF+4*i+r)}")
        self.pack_write([0, 1], None, V_S[0])
        self.wait_ds_all()
        for i in range(4):
            a = V_X + 10 + (i & 1)
            self.ds(f"ds_read_b128 {vr(V_KF+4*i,4)}, {vr(a)} offset:{i*2048}", ("R", i))
        for i in range(4):
            self.wait_ds([("R", i)])
            so = sr(S_T2) if i < 2 else sr(S_T3)
            oo = f" offset:{(i&1)*2048}" if (i & 1) else ""
            e(f"buffer_store_dwordx4 {vr(V_KF+4*i,4)}, {vr(V_X+12)}, {sr(S_O,4)}, {so} offen{oo}{o.stflags}")
        self.L("L_end")
        e("s_endpgm")
        self.emit_rare_blocks()
        self.lines += [
            '.section .rodata,"a"',
            ".p2align 6",
            f".amdhsa_kernel {KNAME}",
            "  .amdhsa_next_free_vgpr 256",
            "  .amdhsa_next_free_sgpr 64",
            "  .amdhsa_accum_offset 256",
            "  .amdhsa_group_segment_fixed_size 0",
            "  .amdhsa_kernarg_size 48",
            "  .amdhsa_user_sgpr_count 2",
            "  .amdhsa_user_sgpr_kernarg_segment_ptr 1",
            "  .amdhsa_system_sgpr_workgroup_id_x 1",
            ".end_amdhsa_kernel",
        ]
        return "\n".join(self.lines) + "\n"

    def lane_consts(self, half):
        e = self.e
        T = V_T
        e(f"v_and_b32 {vr(T)}, 31, {vr(V_LANE)}")
        e(f"v_lshrrev_b32 {vr(T+1)}, 5, {vr(V_LANE)}")
        e(f"v_and_b32 {vr(T+2)}, 15, {vr(V_LANE)}")
        e(f"v_xor_b32 {vr(T+2)}, {vr(T+2)}, {vr(T+1)}")
        e(f"v_lshlrev_b32 {vr(T+2)}, 4, {vr(T+2)}")
        e(f"v_lshl_add_u32 {vr(V_LANEK)}, {vr(T)}, 8, {vr(T+2)}")
        e(f"v_bfe_u32 {vr(T)}, {vr(V_LANE)}, 2, 2")
        e(f"v_lshl_add_u32 {vr(T+2)}, {vr(T+1)}, 2, {vr(T)}")
        e(f"v_lshlrev_b32 {vr(T+2)}, 8, {vr(T+2)}")
        e(f"v_lshl_add_u32 {vr(T+2)}, {vr(T)}, 6, {vr(T+2)}")
        e(f"v_bfe_u32 {vr(T)}, {vr(V_LANE)}, 4, 1")
        e(f"v_lshl_add_u32 {vr(T+2)}, {vr(T)}, 5, {vr(T+2)}")
        e(f"v_and_b32 {vr(T)}, 3, {vr(V_LANE)}")
        e(f"v_lshl_add_u32 {vr(V_LANEV)}, {vr(T)}, 3, {vr(T+2)}")
        if half:
            e(f"s_lshl_b32 {sr(S_T0)}, {sr(S_SUB)}, 13")
            e(f"v_add_u32 {vr(V_LANEK)}, {sr(S_T0)}, {vr(V_LANEK)}")
            e(f"s_lshl_b32 {sr(S_T1)}, {sr(S_SUB)}, 7")
            e(f"s_or_b32 {sr(S_T0)}, {sr(S_T0)}, {sr(S_T1)}")
            e(f"v_xor_b32 {vr(V_LANEV)}, {sr(S_T0)}, {vr(V_LANEV)}")


def main():
    ap = argparse.ArgumentParser()
    ap.add_argument("-o", default="standalone__gqa_softmax__near_ridge.s")
    ap.add_argument("--thr", type=float, default=8.0)
    ap.add_argument("--ldflags", default="")
    ap.add_argument("--stflags", default="")
    ap.add_argument("--rot", type=int, default=0)
    ap.add_argument("--rot_shift", type=int, default=0)
    ap.add_argument("--prio_full", type=int, default=0)
    ap.add_argument("--prio_half", type=int, default=0)
    o = ap.parse_args()
    o.ldflags = (" " + o.ldflags.strip()) if o.ldflags.strip() else ""
    o.stflags = (" " + o.stflags.strip()) if o.stflags.strip() else ""
    g = G(o)
    open(o.o, "w").write(g.build())


if __name__ == "__main__":
    main()
```

```python
import sys, re, struct, math, argparse

def f32bits(x):
    return struct.unpack("<I", struct.pack("<f", x))[0]

KNAME = "standalone__gqa_softmax__near_ridge_kernel"

V_LANE = 1
V_OFFK = 2
V_OFFV = 6
V_LANEK = 7
V_LANEV = 8
V_NMC = 9
V_THR = 10
V_L = 11
V_M = 12
V_FP = 13
V_MX = 14
V_MX2 = 15
V_AK = 16
V_AV = 24
V_T = 28
V_Q = 32
V_O = 64
V_S = [128, 144]
V_P = [160, 168]
V_KF = 176
V_VF = 208
V_X = 240

S_Q, S_K, S_V, S_O = 12, 16, 20, 24
S_W = 28
S_STEP = 29
S_KSL = 30
S_VSL = 31
S_C = 32
S_NC = 33
S_FLAG = 34
S_KOFF = 36
S_VOFF = 37
S_KDST = 38
S_VDST = 39
S_T0 = 40
S_T1 = 41
S_OR = 42
S_LW = 44
S_SUB = 45
S_QB = 46
S_OB = 47
S_T2 = 48
S_T3 = 49

SLOT = 16384
KRING0 = 0
VRING0 = 5 * SLOT
LDS_TOTAL = 10 * SLOT

C_SCALE = (128 ** -0.5) * math.log2(math.e)


def vr(a, n=1):
    return f"v{a}" if n == 1 else f"v[{a}:{a+n-1}]"


def sr(a, n=1):
    return f"s{a}" if n == 1 else f"s[{a}:{a+n-1}]"


class G:
    def __init__(self, opt):
        self.o = opt
        self.lines = []
        self.dsq = []
        self.nrare = 0
        self.rare_blocks = []

    def e(self, s):
        self.lines.append("    " + s)

    def L(self, s):
        self.lines.append(s + ":")

    def c(self, s):
        self.lines.append("    ; " + s)

    def stamp(self, idx=None, real=False):
        if not self.o.stamp:
            return
        self.e(f"{'s_memrealtime' if real else 's_memtime'} s[50:51]")
        self.e("s_waitcnt lgkmcnt(0)")
        self.dsq = []
        self.e(f"v_mov_b32 v255, s50")
        self.e(f"v_mov_b32 v254, 0")
        self.e(f"buffer_store_dword v255, v254, s[52:55], s56 offen")
        self.e(f"s_add_u32 s56, s56, 4")

    def ds(self, text, tag):
        self.e(text)
        self.dsq.append(tag)

    def wait_ds(self, tags):
        last = -1
        for i, t in enumerate(self.dsq):
            if t in tags:
                last = i
        if last < 0:
            return
        n = len(self.dsq) - 1 - last
        assert n <= 15, n
        self.e(f"s_waitcnt lgkmcnt({n})")
        self.dsq = self.dsq[last + 1:]

    def wait_ds_all(self, extra=""):
        self.e(f"s_waitcnt {extra}lgkmcnt(0)")
        self.dsq = []

    def mfma(self, d, a, b, first=False):
        cc = "0" if first else vr(d, 16)
        return f"v_mfma_f32_32x32x16_bf16 {vr(d,16)}, {vr(a,4)}, {vr(b,4)}, {cc}"

    def softmax_ops(self, S, P):
        ops = []
        F = lambda r: (f"v_fma_f32 {vr(S+r)}, {vr(S+r)}, {sr(S_C)}, {vr(V_NMC)}", 1)
        E = lambda r: (f"v_exp_f32 {vr(S+r)}, {vr(S+r)}", 2)
        A = lambda r: (f"v_add_f32 {vr(V_L)}, {vr(V_L)}, {vr(S+r)}", 1)
        Cv = lambda i: (f"v_cvt_pk_bf16_f32 {vr(P+i)}, {vr(S+2*i)}, {vr(S+2*i+1)}", 1)
        ops += [F(0), F(1)]
        for i in range(0, 9):
            if i <= 7:
                ops.append(E(2 * i))
                if i + 1 <= 7:
                    ops.append(F(2 * i + 2))
                ops.append(E(2 * i + 1))
                if i + 1 <= 7:
                    ops.append(F(2 * i + 3))
            if i - 1 >= 0:
                ops += [A(2 * i - 2), A(2 * i - 1), Cv(i - 1)]
        return ops

    def max_ops(self, S):
        m, m2 = vr(V_MX), vr(V_MX2)
        s = lambda r: vr(S + r)
        return [
            (f"v_max3_f32 {m}, {s(0)}, {s(1)}, {s(2)}", 1),
            (f"v_max3_f32 {m2}, {s(3)}, {s(4)}, {s(5)}", 1),
            (f"v_max3_f32 {m}, {m}, {s(6)}, {s(7)}", 1),
            (f"v_max3_f32 {m2}, {m2}, {s(8)}, {s(9)}", 1),
            (f"v_max3_f32 {m}, {m}, {s(10)}, {s(11)}", 1),
            (f"v_max3_f32 {m2}, {m2}, {s(12)}, {s(13)}", 1),
            (f"v_max3_f32 {m}, {m}, {s(14)}, {s(15)}", 1),
            (f"v_max_f32 {m}, {m}, {m2}", 1),
            (f"v_cmp_gt_f32 vcc, {m}, {vr(V_THR)}", 1),
        ]

    def kaddr_ops(self, sbase):
        ops = [(f"v_add_u32 {vr(V_AK)}, {sbase}, {vr(V_LANEK)}", 1)]
        for kk in range(1, 8):
            ops.append((f"v_xor_b32 {vr(V_AK+kk)}, {kk<<5}, {vr(V_AK)}", 1))
        return ops

    def vaddr_ops(self, sbase):
        ops = [(f"v_add_u32 {vr(V_AV)}, {sbase}, {vr(V_LANEV)}", 1)]
        for db in range(1, 4):
            ops.append((f"v_xor_b32 {vr(V_AV+db)}, {db<<6}, {vr(V_AV)}", 1))
        return ops

    def adv_kslot(self):
        return [f"s_add_u32 {sr(S_KSL)}, {sr(S_KSL)}, {SLOT}",
                f"s_cmp_eq_u32 {sr(S_KSL)}, {KRING0+5*SLOT}",
                f"s_cselect_b32 {sr(S_KSL)}, {KRING0}, {sr(S_KSL)}"]

    def adv_vslot(self):
        return [f"s_add_u32 {sr(S_VSL)}, {sr(S_VSL)}, {SLOT}",
                f"s_cmp_eq_u32 {sr(S_VSL)}, {VRING0+5*SLOT}",
                f"s_cselect_b32 {sr(S_VSL)}, {VRING0}, {sr(S_VSL)}"]

    def kread(self, kk, dst, off):
        o = f" offset:{off}" if off else ""
        return (f"ds_read_b128 {vr(dst+4*kk,4)}, {vr(V_AK+kk)}{o}", ("K", dst, kk))

    def vread(self, i, u, dst, off):
        jj, db = i >> 2, i & 3
        o = off + (16 * jj + 8 * u) * 256
        os_ = f" offset:{o}" if o else ""
        return (f"ds_read_b64_tr_b16 {vr(dst+4*i+2*u,2)}, {vr(V_AV+db)}{os_}", ("V", dst, i))

    def rare_site(self, kind):
        k = self.nrare
        self.nrare += 1
        lab, ret = f"L_rare{k}", f"L_ret{k}"
        if kind == "AB":
            self.e(f"s_or_b64 {sr(S_OR,2)}, vcc, {sr(S_FLAG,2)}")
            self.e(f"s_cbranch_scc1 {lab}")
        elif kind == "A":
            self.e(f"s_cbranch_vccnz {lab}")
        else:
            self.e(f"s_cmp_lg_u64 {sr(S_FLAG,2)}, 0")
            self.e(f"s_cbranch_scc1 {lab}")
        self.L(ret)
        self.rare_blocks.append((lab, ret, kind))

    def emit_rare_blocks(self):
        for lab, ret, kind in self.rare_blocks:
            self.L(lab)
            if kind in ("AB", "B"):
                if kind == "AB":
                    self.e(f"s_cmp_eq_u64 {sr(S_FLAG,2)}, 0")
                    self.e(f"s_cbranch_scc1 {lab}_a")
                self.e("s_nop 15")
                self.e("s_nop 3")
                for r in range(64):
                    self.e(f"v_mul_f32 {vr(V_O+r)}, {vr(V_FP)}, {vr(V_O+r)}")
                self.e(f"s_mov_b64 {sr(S_FLAG,2)}, 0")
                if kind == "AB":
                    self.e(f"s_cbranch_vccz {lab}_x")
                    self.L(f"{lab}_a")
            if kind in ("AB", "A"):
                m, m2 = vr(V_MX), vr(V_MX2)
                self.e(f"v_mov_b32 {m2}, {m}")
                self.e("s_nop 1")
                self.e(f"v_permlane32_swap_b32 {m}, {m2}")
                self.e("s_nop 1")
                self.e(f"v_max3_f32 {m}, {m}, {m2}, {vr(V_M)}")
                self.e(f"v_sub_f32 {m2}, {vr(V_M)}, {m}")
                self.e(f"v_mul_f32 {m2}, {sr(S_C)}, {m2}")
                self.e(f"v_exp_f32 {vr(V_FP)}, {m2}")
                self.e(f"v_mov_b32 {vr(V_M)}, {m}")
                self.e(f"v_mul_f32 {vr(V_NMC)}, {sr(S_NC)}, {m}")
                self.e(f"v_add_f32 {vr(V_THR)}, 0x{f32bits(self.o.thr/C_SCALE):08x}, {m}")
                self.e(f"v_mul_f32 {vr(V_L)}, {vr(V_FP)}, {vr(V_L)}")
                self.e(f"s_mov_b64 {sr(S_FLAG,2)}, 1")
            self.L(f"{lab}_x")
            self.e("s_nop 1")
            self.e(f"s_branch {ret}")

    def distribute(self, mf, valu, fixed, first_gap=0, last_gap=None):
        n = len(mf)
        if last_gap is None:
            last_gap = n - 1
        ng = last_gap - first_gap + 1
        tot = sum(c for _, c in valu)
        idx = 0
        cum = 0
        for g in range(n):
            text, wt = mf[g]
            if wt:
                self.wait_ds(wt)
            self.e(text)
            for it in fixed.get(g, []):
                self.fixed_item(it)
            if first_gap <= g <= last_gap:
                target = tot * (g - first_gap + 1) / ng
                while idx < len(valu) and (cum + valu[idx][1] * 0.5 <= target or g == last_gap):
                    self.e(valu[idx][0])
                    cum += valu[idx][1]
                    idx += 1
            for it in fixed.get(("post", g), []):
                self.fixed_item(it)
        assert idx == len(valu)

    def fixed_item(self, it):
        if it[0] == "ds":
            self.ds(it[1], it[2])
        elif it[0] == "raw":
            self.e(it[1])
        elif it[0] == "bar":
            self.wait_ds_all()
            self.e("s_barrier")
            self.stamp()

    def slot_full(self, p, qk=True, pv=True, bar=False, kread=True, upd_k=False, upd_v=False, kf=V_KF):
        self.c(f"---- full slot p={p} qk={qk} pv={pv} bar={bar} kread={kread}")
        mf = []
        fixed = {}
        if qk:
            for kk in range(8):
                wt = None
                if kk == 0:
                    wt = [("K", kf, x) for x in range(4)]
                if kk == 4:
                    wt = [("K", kf, x) for x in range(4, 8)]
                mf.append((self.mfma(V_S[1 - p], kf + 4 * kk, V_Q + 4 * kk, first=(kk == 0)), wt))
        nq = len(mf)
        if pv:
            for i in range(8):
                jj, db = i >> 2, i & 3
                wt = None
                if i == 0:
                    wt = [("V", V_VF, x) for x in range(4)]
                if i == 4:
                    wt = [("V", V_VF, x) for x in range(4, 8)]
                mf.append((self.mfma(V_O + 16 * db, V_VF + 4 * i, V_P[1 - p] + 4 * jj), wt))
            assert qk
            for i in range(8):
                fixed.setdefault(i, [])
                for u in range(2):
                    t, tag = self.vread(i, u, V_VF, (1 - p) * 8192)
                    fixed[i].append(("ds", t, tag))
        n = len(mf)
        if pv:
            kg = [10, 10, 11, 11, 12, 13, 14, 15]
            bar_gap = 10
        else:
            kg = [7] * 8
            bar_gap = 7
        valu = []
        pre = []
        if upd_k:
            fixed.setdefault(0, [])
            fixed[0] = [("raw", t) for t in self.adv_kslot()] + fixed[0]
            valu += self.kaddr_ops(sr(S_KSL))
        sm = self.softmax_ops(V_S[p], V_P[p])
        valu += sm
        if upd_v:
            fixed.setdefault(8 if pv else 7, [])
            vops = self.vaddr_ops(sr(S_VSL))
        mx = self.max_ops(V_S[1 - p]) if qk else []
        if pv:
            if upd_v:
                fixed[8] = fixed[8] + [("raw", t) for t in self.adv_vslot()]
                valu += vops
            valu += mx
            if bar:
                fixed.setdefault(bar_gap, [])
                fixed[bar_gap].append(("bar",))
            if kread:
                for kk in range(8):
                    t, tag = self.kread(kk, V_KF, p * 8192)
                    fixed.setdefault(kg[kk], []).append(("ds", t, tag))
            self.distribute(mf, valu, fixed)
        else:
            half = len(valu) * 45 // 100
            self.distribute(mf, valu[:half], fixed)
            if bar:
                self.fixed_item(("bar",))
            if kread:
                for kk in range(8):
                    t, tag = self.kread(kk, V_KF, p * 8192)
                    self.ds(t, tag)
            rest = valu[half:]
            if upd_v:
                rest += vops
            rest += mx
            for t, _ in rest:
                self.e(t)

    def dma_k(self):
        nt = self.o.ldflags
        self.e(f"s_mov_b32 m0, {sr(S_KDST)}")
        self.e(f"s_add_u32 {sr(S_KDST)}, {sr(S_KDST)}, {SLOT}")
        for p in range(4):
            o = f" offset:{p*1024}" if p else ""
            self.e(f"buffer_load_dwordx4 {vr(V_OFFK+p)}, {sr(S_K,4)}, {sr(S_KOFF)} offen{o}{nt} lds")
        self.e(f"s_add_u32 {sr(S_KOFF)}, {sr(S_KOFF)}, {SLOT}")
        self.e(f"s_and_b32 {sr(S_KOFF)}, {sr(S_KOFF)}, 0x3ffff")
        self.e(f"s_sub_u32 {sr(S_T0)}, {sr(S_KDST)}, {5*SLOT}")
        self.e(f"s_cmp_ge_u32 {sr(S_KDST)}, {KRING0+5*SLOT}")
        self.e(f"s_cselect_b32 {sr(S_KDST)}, {sr(S_T0)}, {sr(S_KDST)}")

    def dma_v(self):
        nt = self.o.ldflags
        self.e(f"s_mov_b32 m0, {sr(S_VDST)}")
        self.e(f"s_add_u32 {sr(S_VDST)}, {sr(S_VDST)}, {SLOT}")
        for p in range(4):
            o = f" offset:{p*1024}" if p else ""
            self.e(f"buffer_load_dwordx4 {vr(V_OFFV)}, {sr(S_V,4)}, {sr(S_VOFF)} offen{o}{nt} lds")
        self.e(f"s_add_u32 {sr(S_VOFF)}, {sr(S_VOFF)}, {SLOT}")
        self.e(f"s_and_b32 {sr(S_VOFF)}, {sr(S_VOFF)}, 0x3ffff")
        self.e(f"s_sub_u32 {sr(S_T0)}, {sr(S_VDST)}, {5*SLOT}")
        self.e(f"s_cmp_ge_u32 {sr(S_VDST)}, {VRING0+5*SLOT}")
        self.e(f"s_cselect_b32 {sr(S_VDST)}, {sr(S_T0)}, {sr(S_VDST)}")

    def dma_q(self, sdst, soff):
        nt = self.o.ldflags
        self.e(f"s_mov_b32 m0, {sdst}")
        self.e("s_nop 0")
        for p in range(4):
            o = f" offset:{p*1024}" if p else ""
            self.e(f"buffer_load_dwordx4 {vr(V_OFFK+p)}, {sr(S_Q,4)}, {soff} offen{o}{nt} lds")

    def init_state(self):
        for r in range(64):
            self.e(f"v_mov_b32 {vr(V_O+r)}, 0")
        self.e(f"v_mov_b32 {vr(V_M)}, 0x{f32bits(-3.0e38):08x}")
        self.e(f"v_mov_b32 {vr(V_THR)}, 0x{f32bits(-3.0e38):08x}")
        self.e(f"v_mov_b32 {vr(V_NMC)}, 0")
        self.e(f"v_mov_b32 {vr(V_L)}, 0")
        self.e(f"v_mov_b32 {vr(V_FP)}, 0")
        self.e(f"s_mov_b64 {sr(S_FLAG,2)}, 0")

    def read_q(self, sqaddr):
        for t, _ in self.kaddr_ops(sqaddr):
            self.e(t)
        for kk in range(8):
            t, tag = self.kread(kk, V_Q, 0)
            self.ds(t, tag)

    def lsum(self):
        self.e(f"v_mov_b32 {vr(V_T)}, {vr(V_L)}")
        self.e("s_nop 1")
        self.e(f"v_permlane32_swap_b32 {vr(V_L)}, {vr(V_T)}")
        self.e("s_nop 1")
        self.e(f"v_add_f32 {vr(V_L)}, {vr(V_L)}, {vr(V_T)}")

    def pack_write(self, tiles, scale_reg, tmp):
        q = 0
        for t in tiles:
            for gp in range(2):
                base = V_O + 16 * t + 8 * gp
                T = tmp + 4 * (q & 1)
                q += 1
                if scale_reg is not None:
                    for r in range(8):
                        self.e(f"v_mul_f32 {vr(base+r)}, {vr(scale_reg)}, {vr(base+r)}")
                for i in range(4):
                    self.e(f"v_cvt_pk_bf16_f32 {vr(T+i)}, {vr(base+2*i)}, {vr(base+2*i+1)}")
                self.e("s_nop 1")
                self.e(f"v_permlane32_swap_b32 {vr(T)}, {vr(T+2)}")
                self.e(f"v_permlane32_swap_b32 {vr(T+1)}, {vr(T+3)}")
                self.e("s_nop 0")
                self.ds(f"ds_write_b128 {vr(V_AK+2*t+gp)}, {vr(T,4)}", ("W", t, gp))

    def build(self):
        o = self.o
        e = self.e
        hdr = open("standalone__gqa_softmax__near_ridge.s.ref").read().split("\n")
        for ln in hdr:
            if ln.startswith("; @launch"):
                break
            self.lines.append(ln)
        self.lines.append(f"; @launch grid=(256,1,1) block=(512,1,1) lds={LDS_TOTAL}")
        self.lines.append('.amdgcn_target "amdgcn-amd-amdhsa--gfx950"')
        self.lines.append(".text")
        self.lines.append(f".globl {KNAME}")
        self.lines.append(".p2align 8")
        self.lines.append(f".type {KNAME},@function")
        self.L(KNAME)
        e("s_cmp_ge_u32 s2, 256")
        e("s_cbranch_scc1 L_end")
        e("s_load_dwordx8 s[4:11], s[0:1], 0")
        e(f"v_lshrrev_b32 {vr(V_T)}, 6, v0")
        e(f"v_and_b32 {vr(V_LANE)}, 63, v0")
        e(f"v_readfirstlane_b32 {sr(S_W)}, {vr(V_T)}")
        e(f"v_lshrrev_b32 {vr(V_T)}, 4, {vr(V_LANE)}")
        e(f"v_and_b32 {vr(V_T+1)}, 15, {vr(V_LANE)}")
        e(f"v_xor_b32 {vr(V_T+2)}, {vr(V_T+1)}, {vr(V_T)}")
        e(f"v_lshlrev_b32 {vr(V_T+2)}, 4, {vr(V_T+2)}")
        e(f"v_lshl_add_u32 {vr(V_OFFK)}, {vr(V_T)}, 8, {vr(V_T+2)}")
        for p in range(1, 4):
            e(f"v_xor_b32 {vr(V_OFFK+p)}, {p<<6}, {vr(V_OFFK)}")
        e(f"v_lshlrev_b32 {vr(V_T+2)}, 2, {vr(V_T)}")
        e(f"v_xor_b32 {vr(V_T+2)}, {vr(V_T+1)}, {vr(V_T+2)}")
        e(f"v_lshlrev_b32 {vr(V_T+2)}, 4, {vr(V_T+2)}")
        e(f"v_lshl_add_u32 {vr(V_OFFV)}, {vr(V_T)}, 8, {vr(V_T+2)}")
        e(f"s_mul_i32 {sr(S_T0)}, s2, 49152")
        e(f"s_lshl_b32 {sr(S_T1)}, s2, 18")
        e(f"s_sub_u32 {sr(S_LW)}, {sr(S_W)}, 4")
        e(f"s_and_b32 {sr(S_SUB)}, {sr(S_W)}, 1")
        e(f"s_lshr_b32 {sr(S_QB)}, {sr(S_LW)}, 1")
        e(f"s_add_u32 {sr(S_QB)}, {sr(S_QB)}, 4")
        e(f"s_cmp_lt_u32 {sr(S_W)}, 4")
        e(f"s_cselect_b32 {sr(S_QB)}, {sr(S_W)}, {sr(S_QB)}")
        e(f"s_cselect_b32 {sr(S_SUB)}, 0, {sr(S_SUB)}")
        e(f"s_mov_b32 {sr(S_C)}, 0x{f32bits(C_SCALE):08x}")
        e(f"s_mov_b32 {sr(S_NC)}, 0x{f32bits(-C_SCALE):08x}")
        e(f"s_lshl_b32 {sr(S_T2)}, {sr(S_QB)}, 13")
        e(f"s_add_u32 {sr(S_T3)}, {sr(S_T2)}, {4*SLOT}")
        e(f"s_add_u32 {sr(S_OB)}, {sr(S_T2)}, {VRING0+3*SLOT-2*8192}")
        e(f"s_cmp_lt_u32 {sr(S_QB)}, 2")
        e(f"s_cselect_b32 {sr(S_T3)}, {sr(S_T3)}, {sr(S_OB)}")
        if o.stamp:
            e("s_load_dwordx2 s[52:53], s[0:1], 40")
            e("s_memrealtime s[58:59]")
            e("s_memtime s[60:61]")
        e("s_waitcnt lgkmcnt(0)")
        if o.stamp:
            e("s_mov_b32 s54, 0x10000000")
            e("s_mov_b32 s55, 0x00020000")
            e("s_lshl_b32 s56, s2, 3")
            e(f"s_add_u32 s56, s56, {sr(S_W)}")
            e("s_lshl_b32 s56, s56, 9")
        for (srd, ptr, off, nrec) in ((S_Q, 4, S_T0, 49152), (S_K, 6, S_T1, 262144), (S_V, 8, S_T1, 262144), (S_O, 10, S_T0, 49152)):
            e(f"s_add_u32 {sr(srd)}, {sr(ptr)}, {sr(off)}")
            e(f"s_addc_u32 {sr(srd+1)}, {sr(ptr+1)}, 0")
            e(f"s_mov_b32 {sr(srd+2)}, {nrec}")
            e(f"s_mov_b32 {sr(srd+3)}, 0x00020000")
        e(f"s_cmp_ge_u32 {sr(S_W)}, 4")
        e("s_cbranch_scc1 L_half")

        self.c("=========== full waves (0..3) ===========")
        self.dma_q(sr(S_T3), sr(S_T2))
        e(f"s_add_u32 {sr(S_T0)}, {sr(S_T3)}, 4096")
        e(f"s_add_u32 {sr(S_T1)}, {sr(S_T2)}, 4096")
        self.dma_q(sr(S_T0), sr(S_T1))
        self.lane_consts(half=False)
        self.init_state()
        e(f"s_mov_b32 {sr(S_KSL)}, {KRING0}")
        e(f"s_mov_b32 {sr(S_VSL)}, {VRING0}")
        if o.prio_full:
            e(f"s_setprio {o.prio_full}")
        if o.stamp:
            e("v_mov_b32 v254, 0")
            e("v_mov_b32 v255, s58")
            e("buffer_store_dword v255, v254, s[52:55], s56 offen")
            e("v_mov_b32 v253, s60")
            e("buffer_store_dword v253, v254, s[52:55], s56 offen offset:4")
            e("s_add_u32 s56, s56, 8")
        e("s_waitcnt vmcnt(0)")
        e("s_barrier")
        self.stamp()
        self.read_q(sr(S_T3))
        for t, _ in self.kaddr_ops(sr(S_KSL)):
            e(t)
        for kk in range(8):
            t, tag = self.kread(kk, V_KF, 0)
            self.ds(t, tag)
        for kk in range(8):
            if kk % 2 == 0:
                self.wait_ds([("K", V_KF, kk + 1)])
            e(self.mfma(V_S[0], V_KF + 4 * kk, V_Q + 4 * kk, first=(kk == 0)))
            t, tag = self.kread(kk, V_VF, 8192)
            self.ds(t, tag)
        e("s_nop 15")
        for t, _ in self.max_ops(V_S[0]):
            e(t)
        self.rare_site("AB")
        self.slot_full(0, qk=True, pv=False, bar=True, kread=True, upd_k=True, upd_v=True, kf=V_VF)
        self.rare_site("AB")
        e(f"s_mov_b32 {sr(S_STEP)}, 1")
        entry_q = list(self.dsq)
        self.lines.append(".p2align 6")
        self.L("L_floop")
        self.slot_full(1)
        self.rare_site("AB")
        self.slot_full(0, bar=True, upd_k=True, upd_v=True)
        e(f"s_add_u32 {sr(S_STEP)}, {sr(S_STEP)}, 1")
        self.rare_site("AB")
        e(f"s_cmp_lt_u32 {sr(S_STEP)}, 15")
        e("s_cbranch_scc1 L_floop")
        assert self.dsq == entry_q, (self.dsq, entry_q)
        self.slot_full(1)
        self.rare_site("AB")
        self.slot_full(0, kread=False, upd_v=True)
        self.rare_site("AB")
        self.c("---- slot 31': softmax only")
        for t, _ in self.softmax_ops(V_S[1], V_P[1]):
            e(t)
        self.lsum()
        e(f"v_rcp_f32 {vr(V_X)}, {vr(V_L)}")
        e(f"s_lshl_b32 {sr(S_OB)}, {sr(S_W)}, 13")
        for t, _ in self.kaddr_ops(sr(S_OB)):
            e(t)
        for p in range(4):
            e(f"v_add_u32 {vr(V_OFFK+p)}, {sr(S_OB)}, {vr(V_OFFK+p)}")
        e(f"v_lshlrev_b32 {vr(V_X+1)}, 4, {vr(V_LANE)}")
        e(f"s_add_u32 {sr(S_T3)}, {sr(S_T2)}, 4096")
        self.stamp()
        self.wait_ds_all()
        e("s_barrier")
        self.stamp()
        for i in range(8):
            for u in range(2):
                t, tag = self.vread(i, u, V_VF, 0)
                self.ds(t, tag)
        for i in range(8):
            jj, db = i >> 2, i & 3
            if i % 2 == 0:
                self.wait_ds([("V", V_VF, i + 1)])
            e(self.mfma(V_O + 16 * db, V_VF + 4 * i, V_P[0] + 4 * jj))
            for u in range(2):
                t, tag = self.vread(i, u, V_KF, 8192)
                self.ds(t, tag)
        self.rare_site("B")
        for i in range(8):
            jj, db = i >> 2, i & 3
            if i % 4 == 0:
                self.wait_ds([("V", V_KF, i + 3)])
            e(self.mfma(V_O + 16 * db, V_KF + 4 * i, V_P[1] + 4 * jj))
        e("s_barrier")
        self.stamp()
        e("s_nop 7")
        self.pack_write([0, 1, 2, 3], V_X, V_S[0])
        self.wait_ds_all()
        for i in range(8):
            p = i & 3
            self.ds(f"ds_read_b128 {vr(V_KF+4*i,4)}, {vr(V_OFFK+p)} offset:{p*1024+(i>>2)*4096}", ("R", i))
        for i in range(8):
            p = i & 3
            self.wait_ds([("R", i)])
            so = sr(S_T2) if i < 4 else sr(S_T3)
            oo = f" offset:{p*1024}" if p else ""
            e(f"buffer_store_dwordx4 {vr(V_KF+4*i,4)}, {vr(V_X+1)}, {sr(S_O,4)}, {so} offen{oo}{o.stflags}")
        self.stamp()
        if o.stamp:
            e("s_waitcnt vmcnt(0)")
        self.stamp()
        self.stamp(real=True)
        e("s_endpgm")

        self.dsq = []
        self.L("L_half")
        self.c("=========== half waves (4..7): loaders ===========")
        e(f"s_lshl_b32 {sr(S_T0)}, {sr(S_SUB)}, 12")
        e(f"s_add_u32 {sr(S_T1)}, {sr(S_T2)}, {sr(S_T0)}")
        e(f"s_add_u32 {sr(S_T0)}, {sr(S_T3)}, {sr(S_T0)}")
        self.dma_q(sr(S_T0), sr(S_T1))
        e(f"s_lshl_b32 {sr(S_KDST)}, {sr(S_LW)}, 12")
        e(f"s_add_u32 {sr(S_VDST)}, {sr(S_KDST)}, {VRING0}")
        if o.rot:
            e(f"s_lshr_b32 {sr(S_KOFF)}, s2, {o.rot_shift}")
            e(f"s_and_b32 {sr(S_KOFF)}, {sr(S_KOFF)}, 15")
            e(f"s_lshl_b32 {sr(S_KOFF)}, {sr(S_KOFF)}, 14")
            e(f"s_add_u32 {sr(S_KOFF)}, {sr(S_KOFF)}, {sr(S_KDST)}")
        else:
            e(f"s_mov_b32 {sr(S_KOFF)}, {sr(S_KDST)}")
        e(f"s_mov_b32 {sr(S_VOFF)}, {sr(S_KOFF)}")
        self.dma_k(); self.dma_k(); self.dma_v(); self.dma_k(); self.dma_v(); self.dma_k(); self.dma_v()
        self.lane_consts(half=True)
        self.init_state()
        e(f"s_mov_b32 {sr(S_KSL)}, {KRING0}")
        e(f"s_mov_b32 {sr(S_VSL)}, {VRING0+4*SLOT}")
        if o.prio_half:
            e(f"s_setprio {o.prio_half}")
        e(f"s_lshl_b32 {sr(S_T0)}, {sr(S_SUB)}, 13")
        e(f"s_sub_u32 {sr(S_T3)}, {sr(S_T3)}, {sr(S_T0)}")
        e("s_waitcnt vmcnt(24)")
        e("s_barrier")
        self.read_q(sr(S_T3))
        for t, _ in self.kaddr_ops(sr(S_KSL)):
            e(t)
        for kk in range(8):
            t, tag = self.kread(kk, V_KF, 0)
            self.ds(t, tag)
        for kk in range(8):
            if kk % 2 == 0:
                self.wait_ds([("K", V_KF, kk + 1)])
            e(self.mfma(V_S[0], V_KF + 4 * kk, V_Q + 4 * kk, first=(kk == 0)))
        e("s_nop 15")
        for t, _ in self.max_ops(V_S[0]):
            e(t)
        self.rare_site("A")
        for t, _ in self.softmax_ops(V_S[0], V_P[0]):
            e(t)
        self.rare_site("B")
        e(f"s_mov_b32 {sr(S_STEP)}, 1")
        e("s_waitcnt vmcnt(16)")
        e("s_barrier")
        self.dma_k(); self.dma_v()
        e("s_branch L_hab")
        self.lines.append(".p2align 6")
        self.L("L_htop")
        e("s_barrier")
        self.L("L_hab")
        assert not self.dsq
        for t in self.adv_kslot():
            e(t)
        for t, _ in self.kaddr_ops(sr(S_KSL)):
            e(t)
        for kk in range(8):
            t, tag = self.kread(kk, V_KF, 0)
            self.ds(t, tag)
        for t in self.adv_vslot():
            e(t)
        for t, _ in self.vaddr_ops(sr(S_VSL)):
            e(t)
        e(f"s_cmp_gt_u32 {sr(S_STEP)}, 11")
        e("s_cbranch_scc1 L_hnok")
        self.dma_k()
        self.L("L_hnok")
        e(f"s_cmp_gt_u32 {sr(S_STEP)}, 12")
        e("s_cbranch_scc1 L_hnov")
        self.dma_v()
        self.L("L_hnov")
        for kk in range(8):
            if kk % 4 == 0:
                self.wait_ds([("K", V_KF, kk + 3)])
            e(self.mfma(V_S[0], V_KF + 4 * kk, V_Q + 4 * kk, first=(kk == 0)))
            for u in range(2):
                t, tag = self.vread(kk, u, V_VF, 0)
                self.ds(t, tag)
        pvm = []
        for i in range(8):
            jj, db = i >> 2, i & 3
            wt = None
            if i % 4 == 0:
                wt = [("V", V_VF, x) for x in range(i, i + 4)]
            pvm.append((self.mfma(V_O + 16 * db, V_VF + 4 * i, V_P[0] + 4 * jj), wt))
        for t, wt in pvm[:3]:
            if wt:
                self.wait_ds(wt)
            e(t)
        e("s_nop 8")
        mx = self.max_ops(V_S[0])
        for t, _ in mx[:4]:
            e(t)
        e(pvm[3][0])
        for t, _ in mx[4:]:
            e(t)
        self.rare_site("A")
        sm = self.softmax_ops(V_S[0], V_P[0])
        idx_p4 = [i for i, (t, _) in enumerate(sm) if t.startswith(f"v_cvt_pk_bf16_f32 {vr(V_P[0]+4)},")][0]
        self.distribute(pvm[4:], sm[:24], {})
        assert idx_p4 >= 24
        for t, _ in sm[24:]:
            e(t)
        self.rare_site("B")
        e(f"s_cmp_lt_u32 {sr(S_STEP)}, 12")
        e("s_cbranch_scc0 L_htw")
        e(f"s_add_u32 {sr(S_STEP)}, {sr(S_STEP)}, 1")
        e("s_waitcnt vmcnt(24)")
        e("s_branch L_htop")
        self.L("L_htw")
        e(f"s_add_u32 {sr(S_STEP)}, {sr(S_STEP)}, 1")
        e(f"s_cmp_eq_u32 {sr(S_STEP)}, 13")
        e("s_cbranch_scc0 L_htw2")
        e("s_waitcnt vmcnt(20)")
        e("s_branch L_htop")
        self.L("L_htw2")
        e(f"s_cmp_eq_u32 {sr(S_STEP)}, 14")
        e("s_cbranch_scc0 L_htw3")
        e("s_waitcnt vmcnt(12)")
        e("s_branch L_htop")
        self.L("L_htw3")
        e(f"s_cmp_eq_u32 {sr(S_STEP)}, 15")
        e("s_cbranch_scc0 L_hfin")
        e("s_waitcnt vmcnt(4)")
        e("s_branch L_htop")
        self.L("L_hfin")
        XML = VRING0 + 3 * SLOT
        XO = VRING0 + 1 * SLOT
        self.lsum()
        e(f"v_lshlrev_b32 {vr(V_X+1)}, 3, {vr(V_LANE)}")
        e(f"s_lshl_b32 {sr(S_T0)}, {sr(S_LW)}, 9")
        e(f"s_add_u32 {sr(S_T0)}, {sr(S_T0)}, {XML}")
        e(f"s_xor_b32 {sr(S_T1)}, {sr(S_T0)}, 512")
        e(f"v_add_u32 {vr(V_X+2)}, {sr(S_T0)}, {vr(V_X+1)}")
        e(f"v_add_u32 {vr(V_X+3)}, {sr(S_T1)}, {vr(V_X+1)}")
        e(f"v_mov_b32 {vr(V_X+4)}, {vr(V_NMC)}")
        e(f"v_mov_b32 {vr(V_X+5)}, {vr(V_L)}")
        self.ds(f"ds_write_b64 {vr(V_X+2)}, {vr(V_X+4,2)}", ("XW",))
        for t in self.adv_vslot():
            e(t)
        for t, _ in self.vaddr_ops(sr(S_VSL)):
            e(t)
        e(f"v_lshlrev_b32 {vr(V_X+1)}, 4, {vr(V_LANE)}")
        e(f"s_lshl_b32 {sr(S_T0)}, {sr(S_LW)}, 13")
        e(f"s_add_u32 {sr(S_T0)}, {sr(S_T0)}, {XO}")
        e(f"s_xor_b32 {sr(S_T1)}, {sr(S_T0)}, 8192")
        e(f"v_add_u32 {vr(V_X+8)}, {sr(S_T0)}, {vr(V_X+1)}")
        e(f"v_add_u32 {vr(V_X+9)}, {sr(S_T1)}, {vr(V_X+1)}")
        e(f"s_lshl_b32 {sr(S_OB)}, {sr(S_W)}, 13")
        e(f"s_lshl_b32 {sr(S_T0)}, {sr(S_SUB)}, 13")
        e(f"s_sub_u32 {sr(S_T0)}, {sr(S_OB)}, {sr(S_T0)}")
        for t, _ in self.kaddr_ops(sr(S_T0))[:4]:
            e(t)
        e(f"v_lshrrev_b32 {vr(V_T)}, 3, {vr(V_LANE)}")
        e(f"v_and_b32 {vr(V_T+1)}, 7, {vr(V_LANE)}")
        e(f"v_xor_b32 {vr(V_T+2)}, {vr(V_T+1)}, {vr(V_T)}")
        e(f"v_lshlrev_b32 {vr(V_T+2)}, 4, {vr(V_T+2)}")
        e(f"v_lshl_add_u32 {vr(V_X+10)}, {vr(V_T)}, 8, {vr(V_T+2)}")
        e(f"v_add_u32 {vr(V_X+10)}, {sr(S_OB)}, {vr(V_X+10)}")
        e(f"v_xor_b32 {vr(V_X+11)}, 0x80, {vr(V_X+10)}")
        e(f"v_lshlrev_b32 {vr(V_T+1)}, 4, {vr(V_T+1)}")
        e(f"v_lshl_add_u32 {vr(V_X+12)}, {vr(V_T)}, 8, {vr(V_T+1)}")
        e(f"s_lshl_b32 {sr(S_T0)}, {sr(S_SUB)}, 7")
        e(f"v_add_u32 {vr(V_X+12)}, {sr(S_T0)}, {vr(V_X+12)}")
        e(f"s_add_u32 {sr(S_T3)}, {sr(S_T2)}, 4096")
        self.wait_ds_all("vmcnt(0) ")
        e("s_barrier")
        self.ds(f"ds_read_b64 {vr(V_X+6,2)}, {vr(V_X+3)}", ("XR",))
        for i in range(8):
            for u in range(2):
                t, tag = self.vread(i, u, V_VF, 0)
                self.ds(t, tag)
        pvm = []
        for i in range(8):
            jj, db = i >> 2, i & 3
            wt = None
            if i % 2 == 0:
                wt = [("V", V_VF, i + 1)]
            pvm.append((self.mfma(V_O + 16 * db, V_VF + 4 * i, V_P[0] + 4 * jj), wt))
        fac = [
            (f"v_min_f32 {vr(V_T)}, {vr(V_NMC)}, {vr(V_X+6)}", 1),
            (f"v_sub_f32 {vr(V_T+1)}, {vr(V_T)}, {vr(V_NMC)}", 1),
            (f"v_sub_f32 {vr(V_T+2)}, {vr(V_T)}, {vr(V_X+6)}", 1),
            (f"v_exp_f32 {vr(V_T+1)}, {vr(V_T+1)}", 2),
            (f"v_exp_f32 {vr(V_T+2)}, {vr(V_T+2)}", 2),
            (f"s_nop 0", 1),
            (f"v_mul_f32 {vr(V_T+3)}, {vr(V_T+1)}, {vr(V_L)}", 1),
            (f"v_fma_f32 {vr(V_T+3)}, {vr(V_T+2)}, {vr(V_X+7)}, {vr(V_T+3)}", 1),
            (f"v_rcp_f32 {vr(V_T+3)}, {vr(V_T+3)}", 2),
            (f"s_nop 0", 1),
            (f"v_mul_f32 {vr(V_X)}, {vr(V_T+1)}, {vr(V_T+3)}", 1),
        ]
        self.distribute(pvm, fac, {}, first_gap=1, last_gap=5)
        e("s_nop 15")
        for i in range(8):
            base = V_O + 32 + 4 * i
            for r in range(4):
                e(f"v_mul_f32 {vr(base+r)}, {vr(V_X)}, {vr(base+r)}")
            self.ds(f"ds_write_b128 {vr(V_X+8)}, {vr(base,4)} offset:{i*1024}", ("XO", i))
        for r in range(32):
            e(f"v_mul_f32 {vr(V_O+r)}, {vr(V_X)}, {vr(V_O+r)}")
        self.wait_ds_all()
        e("s_barrier")
        for i in range(8):
            self.ds(f"ds_read_b128 {vr(V_KF+4*i,4)}, {vr(V_X+9)} offset:{i*1024}", ("XI", i))
        for i in range(8):
            if i % 2 == 0:
                self.wait_ds([("XI", i + 1)])
            for r in range(4):
                e(f"v_add_f32 {vr(V_O+4*i+r)}, {vr(V_O+4*i+r)}, {vr(V_KF+4*i+r)}")
        self.pack_write([0, 1], None, V_S[0])
        self.wait_ds_all()
        for i in range(4):
            a = V_X + 10 + (i & 1)
            self.ds(f"ds_read_b128 {vr(V_KF+4*i,4)}, {vr(a)} offset:{i*2048}", ("R", i))
        for i in range(4):
            self.wait_ds([("R", i)])
            so = sr(S_T2) if i < 2 else sr(S_T3)
            oo = f" offset:{(i&1)*2048}" if (i & 1) else ""
            e(f"buffer_store_dwordx4 {vr(V_KF+4*i,4)}, {vr(V_X+12)}, {sr(S_O,4)}, {so} offen{oo}{o.stflags}")
        self.L("L_end")
        e("s_endpgm")
        self.emit_rare_blocks()
        self.lines += [
            '.section .rodata,"a"',
            ".p2align 6",
            f".amdhsa_kernel {KNAME}",
            "  .amdhsa_next_free_vgpr 256",
            "  .amdhsa_next_free_sgpr 64",
            "  .amdhsa_accum_offset 256",
            "  .amdhsa_group_segment_fixed_size 0",
            "  .amdhsa_kernarg_size 48",
            "  .amdhsa_user_sgpr_count 2",
            "  .amdhsa_user_sgpr_kernarg_segment_ptr 1",
            "  .amdhsa_system_sgpr_workgroup_id_x 1",
            ".end_amdhsa_kernel",
        ]
        return "\n".join(self.lines) + "\n"

    def lane_consts(self, half):
        e = self.e
        T = V_T
        e(f"v_and_b32 {vr(T)}, 31, {vr(V_LANE)}")
        e(f"v_lshrrev_b32 {vr(T+1)}, 5, {vr(V_LANE)}")
        e(f"v_and_b32 {vr(T+2)}, 15, {vr(V_LANE)}")
        e(f"v_xor_b32 {vr(T+2)}, {vr(T+2)}, {vr(T+1)}")
        e(f"v_lshlrev_b32 {vr(T+2)}, 4, {vr(T+2)}")
        e(f"v_lshl_add_u32 {vr(V_LANEK)}, {vr(T)}, 8, {vr(T+2)}")
        e(f"v_bfe_u32 {vr(T)}, {vr(V_LANE)}, 2, 2")
        e(f"v_lshl_add_u32 {vr(T+2)}, {vr(T+1)}, 2, {vr(T)}")
        e(f"v_lshlrev_b32 {vr(T+2)}, 8, {vr(T+2)}")
        e(f"v_lshl_add_u32 {vr(T+2)}, {vr(T)}, 6, {vr(T+2)}")
        e(f"v_bfe_u32 {vr(T)}, {vr(V_LANE)}, 4, 1")
        e(f"v_lshl_add_u32 {vr(T+2)}, {vr(T)}, 5, {vr(T+2)}")
        e(f"v_and_b32 {vr(T)}, 3, {vr(V_LANE)}")
        e(f"v_lshl_add_u32 {vr(V_LANEV)}, {vr(T)}, 3, {vr(T+2)}")
        if half:
            e(f"s_lshl_b32 {sr(S_T0)}, {sr(S_SUB)}, 13")
            e(f"v_add_u32 {vr(V_LANEK)}, {sr(S_T0)}, {vr(V_LANEK)}")
            e(f"s_lshl_b32 {sr(S_T1)}, {sr(S_SUB)}, 7")
            e(f"s_or_b32 {sr(S_T0)}, {sr(S_T0)}, {sr(S_T1)}")
            e(f"v_xor_b32 {vr(V_LANEV)}, {sr(S_T0)}, {vr(V_LANEV)}")


def main():
    ap = argparse.ArgumentParser()
    ap.add_argument("-o", default="standalone__gqa_softmax__near_ridge.s")
    ap.add_argument("--thr", type=float, default=8.0)
    ap.add_argument("--ldflags", default="")
    ap.add_argument("--stflags", default="")
    ap.add_argument("--rot", type=int, default=0)
    ap.add_argument("--rot_shift", type=int, default=0)
    ap.add_argument("--prio_full", type=int, default=0)
    ap.add_argument("--prio_half", type=int, default=0)
    ap.add_argument("--stamp", type=int, default=0)
    o = ap.parse_args()
    o.ldflags = (" " + o.ldflags.strip()) if o.ldflags.strip() else ""
    o.stflags = (" " + o.stflags.strip()) if o.stflags.strip() else ""
    g = G(o)
    open(o.o, "w").write(g.build())


if __name__ == "__main__":
    main()
```

```python
import sys, re, struct, math, argparse

def f32bits(x):
    return struct.unpack("<I", struct.pack("<f", x))[0]

KNAME = "standalone__gqa_softmax__near_ridge_kernel"

V_LANE = 1
V_OFFK = 2
V_OFFV = 6
V_LANEK = 7
V_LANEV = 8
V_NMC = 9
V_THR = 10
V_L = 11
V_M = 12
V_FP = 13
V_MX = 14
V_MX2 = 15
V_AK = 16
V_AV = 24
V_T = 28
V_Q = 32
V_O = 64
V_S = [128, 144]
V_P = [160, 168]
V_KF = 176
V_VF = 208
V_X = 240

S_Q, S_K, S_V, S_O = 12, 16, 20, 24
S_W = 28
S_STEP = 29
S_KSL = 30
S_VSL = 31
S_C = 32
S_NC = 33
S_FLAG = 34
S_KOFF = 36
S_VOFF = 37
S_KDST = 38
S_VDST = 39
S_T0 = 40
S_T1 = 41
S_OR = 42
S_LW = 44
S_SUB = 45
S_QB = 46
S_OB = 47
S_T2 = 48
S_T3 = 49

SLOT = 16384
KRING0 = 0
VRING0 = 5 * SLOT
LDS_TOTAL = 10 * SLOT

C_SCALE = (128 ** -0.5) * math.log2(math.e)


def vr(a, n=1):
    return f"v{a}" if n == 1 else f"v[{a}:{a+n-1}]"


def sr(a, n=1):
    return f"s{a}" if n == 1 else f"s[{a}:{a+n-1}]"


class G:
    def __init__(self, opt):
        self.o = opt
        self.lines = []
        self.dsq = []
        self.nrare = 0
        self.rare_blocks = []

    def e(self, s):
        self.lines.append("    " + s)

    def L(self, s):
        self.lines.append(s + ":")

    def c(self, s):
        self.lines.append("    ; " + s)

    def stamp(self, idx=None, real=False):
        if not self.o.stamp:
            return
        self.e(f"{'s_memrealtime' if real else 's_memtime'} s[50:51]")
        self.e("s_waitcnt lgkmcnt(0)")
        self.dsq = []
        self.e(f"v_mov_b32 v255, s50")
        self.e(f"v_mov_b32 v254, 0")
        self.e(f"buffer_store_dword v255, v254, s[52:55], s56 offen")
        self.e(f"s_add_u32 s56, s56, 4")

    def ds(self, text, tag):
        self.e(text)
        self.dsq.append(tag)

    def wait_ds(self, tags):
        last = -1
        for i, t in enumerate(self.dsq):
            if t in tags:
                last = i
        if last < 0:
            return
        n = len(self.dsq) - 1 - last
        assert n <= 15, n
        self.e(f"s_waitcnt lgkmcnt({n})")
        self.dsq = self.dsq[last + 1:]

    def wait_ds_all(self, extra=""):
        self.e(f"s_waitcnt {extra}lgkmcnt(0)")
        self.dsq = []

    def mfma(self, d, a, b, first=False):
        cc = "0" if first else vr(d, 16)
        return f"v_mfma_f32_32x32x16_bf16 {vr(d,16)}, {vr(a,4)}, {vr(b,4)}, {cc}"

    def softmax_ops(self, S, P):
        ops = []
        F = lambda r: (f"v_fma_f32 {vr(S+r)}, {vr(S+r)}, {sr(S_C)}, {vr(V_NMC)}", 1)
        E = lambda r: (f"v_exp_f32 {vr(S+r)}, {vr(S+r)}", 2)
        A = lambda r: (f"v_add_f32 {vr(V_L)}, {vr(V_L)}, {vr(S+r)}", 1)
        Cv = lambda i: (f"v_cvt_pk_bf16_f32 {vr(P+i)}, {vr(S+2*i)}, {vr(S+2*i+1)}", 1)
        ops += [F(0), F(1)]
        for i in range(0, 9):
            if i <= 7:
                ops.append(E(2 * i))
                if i + 1 <= 7:
                    ops.append(F(2 * i + 2))
                ops.append(E(2 * i + 1))
                if i + 1 <= 7:
                    ops.append(F(2 * i + 3))
            if i - 1 >= 0:
                ops += [A(2 * i - 2), A(2 * i - 1), Cv(i - 1)]
        return ops

    def max_ops(self, S):
        m, m2 = vr(V_MX), vr(V_MX2)
        s = lambda r: vr(S + r)
        return [
            (f"v_max3_f32 {m}, {s(0)}, {s(1)}, {s(2)}", 1),
            (f"v_max3_f32 {m2}, {s(3)}, {s(4)}, {s(5)}", 1),
            (f"v_max3_f32 {m}, {m}, {s(6)}, {s(7)}", 1),
            (f"v_max3_f32 {m2}, {m2}, {s(8)}, {s(9)}", 1),
            (f"v_max3_f32 {m}, {m}, {s(10)}, {s(11)}", 1),
            (f"v_max3_f32 {m2}, {m2}, {s(12)}, {s(13)}", 1),
            (f"v_max3_f32 {m}, {m}, {s(14)}, {s(15)}", 1),
            (f"v_max_f32 {m}, {m}, {m2}", 1),
            (f"v_cmp_gt_f32 vcc, {m}, {vr(V_THR)}", 1),
        ]

    def kaddr_ops(self, sbase):
        ops = [(f"v_add_u32 {vr(V_AK)}, {sbase}, {vr(V_LANEK)}", 1)]
        for kk in range(1, 8):
            ops.append((f"v_xor_b32 {vr(V_AK+kk)}, {kk<<5}, {vr(V_AK)}", 1))
        return ops

    def vaddr_ops(self, sbase):
        ops = [(f"v_add_u32 {vr(V_AV)}, {sbase}, {vr(V_LANEV)}", 1)]
        for db in range(1, 4):
            ops.append((f"v_xor_b32 {vr(V_AV+db)}, {db<<6}, {vr(V_AV)}", 1))
        return ops

    def adv_kslot(self):
        return [f"s_add_u32 {sr(S_KSL)}, {sr(S_KSL)}, {SLOT}",
                f"s_cmp_eq_u32 {sr(S_KSL)}, {KRING0+5*SLOT}",
                f"s_cselect_b32 {sr(S_KSL)}, {KRING0}, {sr(S_KSL)}"]

    def adv_vslot(self):
        return [f"s_add_u32 {sr(S_VSL)}, {sr(S_VSL)}, {SLOT}",
                f"s_cmp_eq_u32 {sr(S_VSL)}, {VRING0+5*SLOT}",
                f"s_cselect_b32 {sr(S_VSL)}, {VRING0}, {sr(S_VSL)}"]

    def kread(self, kk, dst, off):
        o = f" offset:{off}" if off else ""
        return (f"ds_read_b128 {vr(dst+4*kk,4)}, {vr(V_AK+kk)}{o}", ("K", dst, kk))

    def vread(self, i, u, dst, off):
        jj, db = i >> 2, i & 3
        o = off + (16 * jj + 8 * u) * 256
        os_ = f" offset:{o}" if o else ""
        return (f"ds_read_b64_tr_b16 {vr(dst+4*i+2*u,2)}, {vr(V_AV+db)}{os_}", ("V", dst, i))

    def rare_site(self, kind):
        k = self.nrare
        self.nrare += 1
        lab, ret = f"L_rare{k}", f"L_ret{k}"
        if kind == "AB":
            self.e(f"s_or_b64 {sr(S_OR,2)}, vcc, {sr(S_FLAG,2)}")
            self.e(f"s_cbranch_scc1 {lab}")
        elif kind == "A":
            self.e(f"s_cbranch_vccnz {lab}")
        else:
            self.e(f"s_cmp_lg_u64 {sr(S_FLAG,2)}, 0")
            self.e(f"s_cbranch_scc1 {lab}")
        self.L(ret)
        self.rare_blocks.append((lab, ret, kind))

    def emit_rare_blocks(self):
        for lab, ret, kind in self.rare_blocks:
            self.L(lab)
            if kind in ("AB", "B"):
                if kind == "AB":
                    self.e(f"s_cmp_eq_u64 {sr(S_FLAG,2)}, 0")
                    self.e(f"s_cbranch_scc1 {lab}_a")
                self.e("s_nop 15")
                self.e("s_nop 3")
                for r in range(64):
                    self.e(f"v_mul_f32 {vr(V_O+r)}, {vr(V_FP)}, {vr(V_O+r)}")
                self.e(f"s_mov_b64 {sr(S_FLAG,2)}, 0")
                if kind == "AB":
                    self.e(f"s_cbranch_vccz {lab}_x")
                    self.L(f"{lab}_a")
            if kind in ("AB", "A"):
                m, m2 = vr(V_MX), vr(V_MX2)
                self.e(f"v_mov_b32 {m2}, {m}")
                self.e("s_nop 1")
                self.e(f"v_permlane32_swap_b32 {m}, {m2}")
                self.e("s_nop 1")
                self.e(f"v_max3_f32 {m}, {m}, {m2}, {vr(V_M)}")
                self.e(f"v_sub_f32 {m2}, {vr(V_M)}, {m}")
                self.e(f"v_mul_f32 {m2}, {sr(S_C)}, {m2}")
                self.e(f"v_exp_f32 {vr(V_FP)}, {m2}")
                self.e(f"v_mov_b32 {vr(V_M)}, {m}")
                self.e(f"v_mul_f32 {vr(V_NMC)}, {sr(S_NC)}, {m}")
                self.e(f"v_add_f32 {vr(V_THR)}, 0x{f32bits(self.o.thr/C_SCALE):08x}, {m}")
                self.e(f"v_mul_f32 {vr(V_L)}, {vr(V_FP)}, {vr(V_L)}")
                self.e(f"s_mov_b64 {sr(S_FLAG,2)}, 1")
            self.L(f"{lab}_x")
            self.e("s_nop 1")
            self.e(f"s_branch {ret}")

    def distribute(self, mf, valu, fixed, first_gap=0, last_gap=None):
        n = len(mf)
        if last_gap is None:
            last_gap = n - 1
        ng = last_gap - first_gap + 1
        tot = sum(c for _, c in valu)
        idx = 0
        cum = 0
        for g in range(n):
            text, wt = mf[g]
            if wt:
                self.wait_ds(wt)
            self.e(text)
            for it in fixed.get(g, []):
                self.fixed_item(it)
            if first_gap <= g <= last_gap:
                target = tot * (g - first_gap + 1) / ng
                while idx < len(valu) and (cum + valu[idx][1] * 0.5 <= target or g == last_gap):
                    self.e(valu[idx][0])
                    cum += valu[idx][1]
                    idx += 1
            for it in fixed.get(("post", g), []):
                self.fixed_item(it)
        assert idx == len(valu)

    def fixed_item(self, it):
        if it[0] == "ds":
            self.ds(it[1], it[2])
        elif it[0] == "raw":
            self.e(it[1])
        elif it[0] == "bar":
            self.wait_ds_all()
            self.e("s_barrier")
            if not (self.o.stamp == 2 and getattr(self, "inloop", False)):
                self.stamp()

    def slot_full(self, p, qk=True, pv=True, bar=False, kread=True, upd_k=False, upd_v=False, kf=V_KF):
        self.c(f"---- full slot p={p} qk={qk} pv={pv} bar={bar} kread={kread}")
        mf = []
        fixed = {}
        if qk:
            for kk in range(8):
                wt = None
                if kk == 0:
                    wt = [("K", kf, x) for x in range(4)]
                if kk == 4:
                    wt = [("K", kf, x) for x in range(4, 8)]
                mf.append((self.mfma(V_S[1 - p], kf + 4 * kk, V_Q + 4 * kk, first=(kk == 0)), wt))
        nq = len(mf)
        if pv:
            for i in range(8):
                jj, db = i >> 2, i & 3
                wt = None
                if i == 0:
                    wt = [("V", V_VF, x) for x in range(4)]
                if i == 4:
                    wt = [("V", V_VF, x) for x in range(4, 8)]
                mf.append((self.mfma(V_O + 16 * db, V_VF + 4 * i, V_P[1 - p] + 4 * jj), wt))
            assert qk
            for i in range(8):
                fixed.setdefault(i, [])
                for u in range(2):
                    t, tag = self.vread(i, u, V_VF, (1 - p) * 8192)
                    fixed[i].append(("ds", t, tag))
        n = len(mf)
        if pv:
            kg = [10, 10, 11, 11, 12, 13, 14, 15]
            bar_gap = 10
        else:
            kg = [7] * 8
            bar_gap = 7
        valu = []
        pre = []
        if upd_k:
            fixed.setdefault(0, [])
            fixed[0] = [("raw", t) for t in self.adv_kslot()] + fixed[0]
            valu += self.kaddr_ops(sr(S_KSL))
        sm = self.softmax_ops(V_S[p], V_P[p])
        valu += sm
        if upd_v:
            fixed.setdefault(8 if pv else 7, [])
            vops = self.vaddr_ops(sr(S_VSL))
        mx = self.max_ops(V_S[1 - p]) if qk else []
        if pv:
            if upd_v:
                fixed[8] = fixed[8] + [("raw", t) for t in self.adv_vslot()]
                valu += vops
            valu += mx
            if bar:
                fixed.setdefault(bar_gap, [])
                fixed[bar_gap].append(("bar",))
            if kread:
                for kk in range(8):
                    t, tag = self.kread(kk, V_KF, p * 8192)
                    fixed.setdefault(kg[kk], []).append(("ds", t, tag))
            self.distribute(mf, valu, fixed)
        else:
            half = len(valu) * 45 // 100
            self.distribute(mf, valu[:half], fixed)
            if bar:
                self.fixed_item(("bar",))
            if kread:
                for kk in range(8):
                    t, tag = self.kread(kk, V_KF, p * 8192)
                    self.ds(t, tag)
            rest = valu[half:]
            if upd_v:
                rest += vops
            rest += mx
            for t, _ in rest:
                self.e(t)

    def dma_k(self):
        nt = self.o.ldflags
        self.e(f"s_mov_b32 m0, {sr(S_KDST)}")
        self.e(f"s_add_u32 {sr(S_KDST)}, {sr(S_KDST)}, {SLOT}")
        for p in range(4):
            o = f" offset:{p*1024}" if p else ""
            self.e(f"buffer_load_dwordx4 {vr(V_OFFK+p)}, {sr(S_K,4)}, {sr(S_KOFF)} offen{o}{nt} lds")
        self.e(f"s_add_u32 {sr(S_KOFF)}, {sr(S_KOFF)}, {SLOT}")
        self.e(f"s_and_b32 {sr(S_KOFF)}, {sr(S_KOFF)}, 0x3ffff")
        self.e(f"s_sub_u32 {sr(S_T0)}, {sr(S_KDST)}, {5*SLOT}")
        self.e(f"s_cmp_ge_u32 {sr(S_KDST)}, {KRING0+5*SLOT}")
        self.e(f"s_cselect_b32 {sr(S_KDST)}, {sr(S_T0)}, {sr(S_KDST)}")

    def dma_v(self):
        nt = self.o.ldflags
        self.e(f"s_mov_b32 m0, {sr(S_VDST)}")
        self.e(f"s_add_u32 {sr(S_VDST)}, {sr(S_VDST)}, {SLOT}")
        for p in range(4):
            o = f" offset:{p*1024}" if p else ""
            self.e(f"buffer_load_dwordx4 {vr(V_OFFV)}, {sr(S_V,4)}, {sr(S_VOFF)} offen{o}{nt} lds")
        self.e(f"s_add_u32 {sr(S_VOFF)}, {sr(S_VOFF)}, {SLOT}")
        self.e(f"s_and_b32 {sr(S_VOFF)}, {sr(S_VOFF)}, 0x3ffff")
        self.e(f"s_sub_u32 {sr(S_T0)}, {sr(S_VDST)}, {5*SLOT}")
        self.e(f"s_cmp_ge_u32 {sr(S_VDST)}, {VRING0+5*SLOT}")
        self.e(f"s_cselect_b32 {sr(S_VDST)}, {sr(S_T0)}, {sr(S_VDST)}")

    def dma_q(self, sdst, soff):
        nt = self.o.ldflags
        self.e(f"s_mov_b32 m0, {sdst}")
        self.e("s_nop 0")
        for p in range(4):
            o = f" offset:{p*1024}" if p else ""
            self.e(f"buffer_load_dwordx4 {vr(V_OFFK+p)}, {sr(S_Q,4)}, {soff} offen{o}{nt} lds")

    def init_state(self):
        for r in range(64):
            self.e(f"v_mov_b32 {vr(V_O+r)}, 0")
        self.e(f"v_mov_b32 {vr(V_M)}, 0x{f32bits(-3.0e38):08x}")
        self.e(f"v_mov_b32 {vr(V_THR)}, 0x{f32bits(-3.0e38):08x}")
        self.e(f"v_mov_b32 {vr(V_NMC)}, 0")
        self.e(f"v_mov_b32 {vr(V_L)}, 0")
        self.e(f"v_mov_b32 {vr(V_FP)}, 0")
        self.e(f"s_mov_b64 {sr(S_FLAG,2)}, 0")

    def read_q(self, sqaddr):
        for t, _ in self.kaddr_ops(sqaddr):
            self.e(t)
        for kk in range(8):
            t, tag = self.kread(kk, V_Q, 0)
            self.ds(t, tag)

    def lsum(self):
        self.e(f"v_mov_b32 {vr(V_T)}, {vr(V_L)}")
        self.e("s_nop 1")
        self.e(f"v_permlane32_swap_b32 {vr(V_L)}, {vr(V_T)}")
        self.e("s_nop 1")
        self.e(f"v_add_f32 {vr(V_L)}, {vr(V_L)}, {vr(V_T)}")

    def pack_write(self, tiles, scale_reg, tmp):
        q = 0
        for t in tiles:
            for gp in range(2):
                base = V_O + 16 * t + 8 * gp
                T = tmp + 4 * (q & 1)
                q += 1
                if scale_reg is not None:
                    for r in range(8):
                        self.e(f"v_mul_f32 {vr(base+r)}, {vr(scale_reg)}, {vr(base+r)}")
                for i in range(4):
                    self.e(f"v_cvt_pk_bf16_f32 {vr(T+i)}, {vr(base+2*i)}, {vr(base+2*i+1)}")
                self.e("s_nop 1")
                self.e(f"v_permlane32_swap_b32 {vr(T)}, {vr(T+2)}")
                self.e(f"v_permlane32_swap_b32 {vr(T+1)}, {vr(T+3)}")
                self.e("s_nop 0")
                self.ds(f"ds_write_b128 {vr(V_AK+2*t+gp)}, {vr(T,4)}", ("W", t, gp))

    def build(self):
        o = self.o
        e = self.e
        hdr = open("standalone__gqa_softmax__near_ridge.s.ref").read().split("\n")
        for ln in hdr:
            if ln.startswith("; @launch"):
                break
            self.lines.append(ln)
        self.lines.append(f"; @launch grid=(256,1,1) block=(512,1,1) lds={LDS_TOTAL}")
        self.lines.append('.amdgcn_target "amdgcn-amd-amdhsa--gfx950"')
        self.lines.append(".text")
        self.lines.append(f".globl {KNAME}")
        self.lines.append(".p2align 8")
        self.lines.append(f".type {KNAME},@function")
        self.L(KNAME)
        e("s_cmp_ge_u32 s2, 256")
        e("s_cbranch_scc1 L_end")
        e("s_load_dwordx8 s[4:11], s[0:1], 0")
        e(f"v_lshrrev_b32 {vr(V_T)}, 6, v0")
        e(f"v_and_b32 {vr(V_LANE)}, 63, v0")
        e(f"v_readfirstlane_b32 {sr(S_W)}, {vr(V_T)}")
        e(f"v_lshrrev_b32 {vr(V_T)}, 4, {vr(V_LANE)}")
        e(f"v_and_b32 {vr(V_T+1)}, 15, {vr(V_LANE)}")
        e(f"v_xor_b32 {vr(V_T+2)}, {vr(V_T+1)}, {vr(V_T)}")
        e(f"v_lshlrev_b32 {vr(V_T+2)}, 4, {vr(V_T+2)}")
        e(f"v_lshl_add_u32 {vr(V_OFFK)}, {vr(V_T)}, 8, {vr(V_T+2)}")
        for p in range(1, 4):
            e(f"v_xor_b32 {vr(V_OFFK+p)}, {p<<6}, {vr(V_OFFK)}")
        e(f"v_lshlrev_b32 {vr(V_T+2)}, 2, {vr(V_T)}")
        e(f"v_xor_b32 {vr(V_T+2)}, {vr(V_T+1)}, {vr(V_T+2)}")
        e(f"v_lshlrev_b32 {vr(V_T+2)}, 4, {vr(V_T+2)}")
        e(f"v_lshl_add_u32 {vr(V_OFFV)}, {vr(V_T)}, 8, {vr(V_T+2)}")
        e(f"s_mul_i32 {sr(S_T0)}, s2, 49152")
        e(f"s_lshl_b32 {sr(S_T1)}, s2, 18")
        e(f"s_sub_u32 {sr(S_LW)}, {sr(S_W)}, 4")
        e(f"s_and_b32 {sr(S_SUB)}, {sr(S_W)}, 1")
        e(f"s_lshr_b32 {sr(S_QB)}, {sr(S_LW)}, 1")
        e(f"s_add_u32 {sr(S_QB)}, {sr(S_QB)}, 4")
        e(f"s_cmp_lt_u32 {sr(S_W)}, 4")
        e(f"s_cselect_b32 {sr(S_QB)}, {sr(S_W)}, {sr(S_QB)}")
        e(f"s_cselect_b32 {sr(S_SUB)}, 0, {sr(S_SUB)}")
        e(f"s_mov_b32 {sr(S_C)}, 0x{f32bits(C_SCALE):08x}")
        e(f"s_mov_b32 {sr(S_NC)}, 0x{f32bits(-C_SCALE):08x}")
        e(f"s_lshl_b32 {sr(S_T2)}, {sr(S_QB)}, 13")
        e(f"s_add_u32 {sr(S_T3)}, {sr(S_T2)}, {4*SLOT}")
        e(f"s_add_u32 {sr(S_OB)}, {sr(S_T2)}, {VRING0+3*SLOT-2*8192}")
        e(f"s_cmp_lt_u32 {sr(S_QB)}, 2")
        e(f"s_cselect_b32 {sr(S_T3)}, {sr(S_T3)}, {sr(S_OB)}")
        if o.stamp:
            e(f"s_load_dwordx2 s[52:53], s[0:1], {32 if o.stamp == 2 else 40}")
            e("s_memrealtime s[58:59]")
            e("s_memtime s[60:61]")
        e("s_waitcnt lgkmcnt(0)")
        if o.stamp:
            e(f"s_mov_b32 s54, {64 if o.stamp == 2 else 0x10000000}")
            e("s_mov_b32 s55, 0x00020000")
            e("s_lshl_b32 s56, s2, 3")
            e(f"s_add_u32 s56, s56, {sr(S_W)}")
            e("s_lshl_b32 s56, s56, 9")
        for (srd, ptr, off, nrec) in ((S_Q, 4, S_T0, 49152), (S_K, 6, S_T1, 262144), (S_V, 8, S_T1, 262144), (S_O, 10, S_T0, 49152)):
            e(f"s_add_u32 {sr(srd)}, {sr(ptr)}, {sr(off)}")
            e(f"s_addc_u32 {sr(srd+1)}, {sr(ptr+1)}, 0")
            e(f"s_mov_b32 {sr(srd+2)}, {nrec}")
            e(f"s_mov_b32 {sr(srd+3)}, 0x00020000")
        e(f"s_cmp_ge_u32 {sr(S_W)}, 4")
        e("s_cbranch_scc1 L_half")

        self.c("=========== full waves (0..3) ===========")
        self.dma_q(sr(S_T3), sr(S_T2))
        e(f"s_add_u32 {sr(S_T0)}, {sr(S_T3)}, 4096")
        e(f"s_add_u32 {sr(S_T1)}, {sr(S_T2)}, 4096")
        self.dma_q(sr(S_T0), sr(S_T1))
        self.lane_consts(half=False)
        self.init_state()
        e(f"s_mov_b32 {sr(S_KSL)}, {KRING0}")
        e(f"s_mov_b32 {sr(S_VSL)}, {VRING0}")
        if o.prio_full:
            e(f"s_setprio {o.prio_full}")
        if o.stamp:
            e("v_mov_b32 v254, 0")
            e("v_mov_b32 v255, s58")
            e("buffer_store_dword v255, v254, s[52:55], s56 offen")
            e("v_mov_b32 v253, s60")
            e("buffer_store_dword v253, v254, s[52:55], s56 offen offset:4")
            e("s_add_u32 s56, s56, 8")
        e("s_waitcnt vmcnt(0)")
        e("s_barrier")
        self.stamp()
        self.read_q(sr(S_T3))
        for t, _ in self.kaddr_ops(sr(S_KSL)):
            e(t)
        for kk in range(8):
            t, tag = self.kread(kk, V_KF, 0)
            self.ds(t, tag)
        for kk in range(8):
            if kk % 2 == 0:
                self.wait_ds([("K", V_KF, kk + 1)])
            e(self.mfma(V_S[0], V_KF + 4 * kk, V_Q + 4 * kk, first=(kk == 0)))
            t, tag = self.kread(kk, V_VF, 8192)
            self.ds(t, tag)
        e("s_nop 15")
        for t, _ in self.max_ops(V_S[0]):
            e(t)
        self.rare_site("AB")
        self.slot_full(0, qk=True, pv=False, bar=True, kread=True, upd_k=True, upd_v=True, kf=V_VF)
        self.rare_site("AB")
        e(f"s_mov_b32 {sr(S_STEP)}, 1")
        entry_q = list(self.dsq)
        self.lines.append(".p2align 6")
        self.L("L_floop")
        self.inloop = True
        self.slot_full(1)
        self.rare_site("AB")
        self.slot_full(0, bar=True, upd_k=True, upd_v=True)
        e(f"s_add_u32 {sr(S_STEP)}, {sr(S_STEP)}, 1")
        self.rare_site("AB")
        e(f"s_cmp_lt_u32 {sr(S_STEP)}, 15")
        e("s_cbranch_scc1 L_floop")
        self.inloop = False
        assert self.dsq == entry_q, (self.dsq, entry_q)
        self.slot_full(1)
        self.rare_site("AB")
        self.slot_full(0, kread=False, upd_v=True)
        self.rare_site("AB")
        self.c("---- slot 31': softmax only")
        for t, _ in self.softmax_ops(V_S[1], V_P[1]):
            e(t)
        self.lsum()
        e(f"v_rcp_f32 {vr(V_X)}, {vr(V_L)}")
        e(f"s_lshl_b32 {sr(S_OB)}, {sr(S_W)}, 13")
        for t, _ in self.kaddr_ops(sr(S_OB)):
            e(t)
        for p in range(4):
            e(f"v_add_u32 {vr(V_OFFK+p)}, {sr(S_OB)}, {vr(V_OFFK+p)}")
        e(f"v_lshlrev_b32 {vr(V_X+1)}, 4, {vr(V_LANE)}")
        e(f"s_add_u32 {sr(S_T3)}, {sr(S_T2)}, 4096")
        self.stamp()
        self.wait_ds_all()
        e("s_barrier")
        self.stamp()
        for i in range(8):
            for u in range(2):
                t, tag = self.vread(i, u, V_VF, 0)
                self.ds(t, tag)
        for i in range(8):
            jj, db = i >> 2, i & 3
            if i % 2 == 0:
                self.wait_ds([("V", V_VF, i + 1)])
            e(self.mfma(V_O + 16 * db, V_VF + 4 * i, V_P[0] + 4 * jj))
            for u in range(2):
                t, tag = self.vread(i, u, V_KF, 8192)
                self.ds(t, tag)
        self.rare_site("B")
        for i in range(8):
            jj, db = i >> 2, i & 3
            if i % 4 == 0:
                self.wait_ds([("V", V_KF, i + 3)])
            e(self.mfma(V_O + 16 * db, V_KF + 4 * i, V_P[1] + 4 * jj))
        e("s_barrier")
        self.stamp()
        e("s_nop 7")
        self.pack_write([0, 1, 2, 3], V_X, V_S[0])
        self.wait_ds_all()
        for i in range(8):
            p = i & 3
            self.ds(f"ds_read_b128 {vr(V_KF+4*i,4)}, {vr(V_OFFK+p)} offset:{p*1024+(i>>2)*4096}", ("R", i))
        for i in range(8):
            p = i & 3
            self.wait_ds([("R", i)])
            so = sr(S_T2) if i < 4 else sr(S_T3)
            oo = f" offset:{p*1024}" if p else ""
            e(f"buffer_store_dwordx4 {vr(V_KF+4*i,4)}, {vr(V_X+1)}, {sr(S_O,4)}, {so} offen{oo}{o.stflags}")
        self.stamp()
        if o.stamp:
            e("s_waitcnt vmcnt(0)")
        self.stamp()
        self.stamp(real=True)
        e("s_endpgm")

        self.dsq = []
        self.L("L_half")
        self.c("=========== half waves (4..7): loaders ===========")
        e(f"s_lshl_b32 {sr(S_T0)}, {sr(S_SUB)}, 12")
        e(f"s_add_u32 {sr(S_T1)}, {sr(S_T2)}, {sr(S_T0)}")
        e(f"s_add_u32 {sr(S_T0)}, {sr(S_T3)}, {sr(S_T0)}")
        self.dma_q(sr(S_T0), sr(S_T1))
        e(f"s_lshl_b32 {sr(S_KDST)}, {sr(S_LW)}, 12")
        e(f"s_add_u32 {sr(S_VDST)}, {sr(S_KDST)}, {VRING0}")
        if o.rot:
            e(f"s_lshr_b32 {sr(S_KOFF)}, s2, {o.rot_shift}")
            e(f"s_and_b32 {sr(S_KOFF)}, {sr(S_KOFF)}, 15")
            e(f"s_lshl_b32 {sr(S_KOFF)}, {sr(S_KOFF)}, 14")
            e(f"s_add_u32 {sr(S_KOFF)}, {sr(S_KOFF)}, {sr(S_KDST)}")
        else:
            e(f"s_mov_b32 {sr(S_KOFF)}, {sr(S_KDST)}")
        e(f"s_mov_b32 {sr(S_VOFF)}, {sr(S_KOFF)}")
        self.dma_k(); self.dma_k(); self.dma_v(); self.dma_k(); self.dma_v(); self.dma_k(); self.dma_v()
        self.lane_consts(half=True)
        self.init_state()
        e(f"s_mov_b32 {sr(S_KSL)}, {KRING0}")
        e(f"s_mov_b32 {sr(S_VSL)}, {VRING0+4*SLOT}")
        if o.prio_half:
            e(f"s_setprio {o.prio_half}")
        e(f"s_lshl_b32 {sr(S_T0)}, {sr(S_SUB)}, 13")
        e(f"s_sub_u32 {sr(S_T3)}, {sr(S_T3)}, {sr(S_T0)}")
        e("s_waitcnt vmcnt(24)")
        e("s_barrier")
        self.read_q(sr(S_T3))
        for t, _ in self.kaddr_ops(sr(S_KSL)):
            e(t)
        for kk in range(8):
            t, tag = self.kread(kk, V_KF, 0)
            self.ds(t, tag)
        for kk in range(8):
            if kk % 2 == 0:
                self.wait_ds([("K", V_KF, kk + 1)])
            e(self.mfma(V_S[0], V_KF + 4 * kk, V_Q + 4 * kk, first=(kk == 0)))
        e("s_nop 15")
        for t, _ in self.max_ops(V_S[0]):
            e(t)
        self.rare_site("A")
        for t, _ in self.softmax_ops(V_S[0], V_P[0]):
            e(t)
        self.rare_site("B")
        e(f"s_mov_b32 {sr(S_STEP)}, 1")
        e("s_waitcnt vmcnt(16)")
        e("s_barrier")
        self.dma_k(); self.dma_v()
        e("s_branch L_hab")
        self.lines.append(".p2align 6")
        self.L("L_htop")
        e("s_barrier")
        self.L("L_hab")
        assert not self.dsq
        for t in self.adv_kslot():
            e(t)
        for t, _ in self.kaddr_ops(sr(S_KSL)):
            e(t)
        for kk in range(8):
            t, tag = self.kread(kk, V_KF, 0)
            self.ds(t, tag)
        for t in self.adv_vslot():
            e(t)
        for t, _ in self.vaddr_ops(sr(S_VSL)):
            e(t)
        e(f"s_cmp_gt_u32 {sr(S_STEP)}, 11")
        e("s_cbranch_scc1 L_hnok")
        self.dma_k()
        self.L("L_hnok")
        e(f"s_cmp_gt_u32 {sr(S_STEP)}, 12")
        e("s_cbranch_scc1 L_hnov")
        self.dma_v()
        self.L("L_hnov")
        for kk in range(8):
            if kk % 4 == 0:
                self.wait_ds([("K", V_KF, kk + 3)])
            e(self.mfma(V_S[0], V_KF + 4 * kk, V_Q + 4 * kk, first=(kk == 0)))
            for u in range(2):
                t, tag = self.vread(kk, u, V_VF, 0)
                self.ds(t, tag)
        pvm = []
        for i in range(8):
            jj, db = i >> 2, i & 3
            wt = None
            if i % 4 == 0:
                wt = [("V", V_VF, x) for x in range(i, i + 4)]
            pvm.append((self.mfma(V_O + 16 * db, V_VF + 4 * i, V_P[0] + 4 * jj), wt))
        for t, wt in pvm[:3]:
            if wt:
                self.wait_ds(wt)
            e(t)
        e("s_nop 8")
        mx = self.max_ops(V_S[0])
        for t, _ in mx[:4]:
            e(t)
        e(pvm[3][0])
        for t, _ in mx[4:]:
            e(t)
        self.rare_site("A")
        sm = self.softmax_ops(V_S[0], V_P[0])
        idx_p4 = [i for i, (t, _) in enumerate(sm) if t.startswith(f"v_cvt_pk_bf16_f32 {vr(V_P[0]+4)},")][0]
        self.distribute(pvm[4:], sm[:24], {})
        assert idx_p4 >= 24
        for t, _ in sm[24:]:
            e(t)
        self.rare_site("B")
        e(f"s_cmp_lt_u32 {sr(S_STEP)}, 12")
        e("s_cbranch_scc0 L_htw")
        e(f"s_add_u32 {sr(S_STEP)}, {sr(S_STEP)}, 1")
        e("s_waitcnt vmcnt(24)")
        e("s_branch L_htop")
        self.L("L_htw")
        e(f"s_add_u32 {sr(S_STEP)}, {sr(S_STEP)}, 1")
        e(f"s_cmp_eq_u32 {sr(S_STEP)}, 13")
        e("s_cbranch_scc0 L_htw2")
        e("s_waitcnt vmcnt(20)")
        e("s_branch L_htop")
        self.L("L_htw2")
        e(f"s_cmp_eq_u32 {sr(S_STEP)}, 14")
        e("s_cbranch_scc0 L_htw3")
        e("s_waitcnt vmcnt(12)")
        e("s_branch L_htop")
        self.L("L_htw3")
        e(f"s_cmp_eq_u32 {sr(S_STEP)}, 15")
        e("s_cbranch_scc0 L_hfin")
        e("s_waitcnt vmcnt(4)")
        e("s_branch L_htop")
        self.L("L_hfin")
        XML = VRING0 + 3 * SLOT
        XO = VRING0 + 1 * SLOT
        self.lsum()
        e(f"v_lshlrev_b32 {vr(V_X+1)}, 3, {vr(V_LANE)}")
        e(f"s_lshl_b32 {sr(S_T0)}, {sr(S_LW)}, 9")
        e(f"s_add_u32 {sr(S_T0)}, {sr(S_T0)}, {XML}")
        e(f"s_xor_b32 {sr(S_T1)}, {sr(S_T0)}, 512")
        e(f"v_add_u32 {vr(V_X+2)}, {sr(S_T0)}, {vr(V_X+1)}")
        e(f"v_add_u32 {vr(V_X+3)}, {sr(S_T1)}, {vr(V_X+1)}")
        e(f"v_mov_b32 {vr(V_X+4)}, {vr(V_NMC)}")
        e(f"v_mov_b32 {vr(V_X+5)}, {vr(V_L)}")
        self.ds(f"ds_write_b64 {vr(V_X+2)}, {vr(V_X+4,2)}", ("XW",))
        for t in self.adv_vslot():
            e(t)
        for t, _ in self.vaddr_ops(sr(S_VSL)):
            e(t)
        e(f"v_lshlrev_b32 {vr(V_X+1)}, 4, {vr(V_LANE)}")
        e(f"s_lshl_b32 {sr(S_T0)}, {sr(S_LW)}, 13")
        e(f"s_add_u32 {sr(S_T0)}, {sr(S_T0)}, {XO}")
        e(f"s_xor_b32 {sr(S_T1)}, {sr(S_T0)}, 8192")
        e(f"v_add_u32 {vr(V_X+8)}, {sr(S_T0)}, {vr(V_X+1)}")
        e(f"v_add_u32 {vr(V_X+9)}, {sr(S_T1)}, {vr(V_X+1)}")
        e(f"s_lshl_b32 {sr(S_OB)}, {sr(S_W)}, 13")
        e(f"s_lshl_b32 {sr(S_T0)}, {sr(S_SUB)}, 13")
        e(f"s_sub_u32 {sr(S_T0)}, {sr(S_OB)}, {sr(S_T0)}")
        for t, _ in self.kaddr_ops(sr(S_T0))[:4]:
            e(t)
        e(f"v_lshrrev_b32 {vr(V_T)}, 3, {vr(V_LANE)}")
        e(f"v_and_b32 {vr(V_T+1)}, 7, {vr(V_LANE)}")
        e(f"v_xor_b32 {vr(V_T+2)}, {vr(V_T+1)}, {vr(V_T)}")
        e(f"v_lshlrev_b32 {vr(V_T+2)}, 4, {vr(V_T+2)}")
        e(f"v_lshl_add_u32 {vr(V_X+10)}, {vr(V_T)}, 8, {vr(V_T+2)}")
        e(f"v_add_u32 {vr(V_X+10)}, {sr(S_OB)}, {vr(V_X+10)}")
        e(f"v_xor_b32 {vr(V_X+11)}, 0x80, {vr(V_X+10)}")
        e(f"v_lshlrev_b32 {vr(V_T+1)}, 4, {vr(V_T+1)}")
        e(f"v_lshl_add_u32 {vr(V_X+12)}, {vr(V_T)}, 8, {vr(V_T+1)}")
        e(f"s_lshl_b32 {sr(S_T0)}, {sr(S_SUB)}, 7")
        e(f"v_add_u32 {vr(V_X+12)}, {sr(S_T0)}, {vr(V_X+12)}")
        e(f"s_add_u32 {sr(S_T3)}, {sr(S_T2)}, 4096")
        self.wait_ds_all("vmcnt(0) ")
        e("s_barrier")
        self.ds(f"ds_read_b64 {vr(V_X+6,2)}, {vr(V_X+3)}", ("XR",))
        for i in range(8):
            for u in range(2):
                t, tag = self.vread(i, u, V_VF, 0)
                self.ds(t, tag)
        pvm = []
        for i in range(8):
            jj, db = i >> 2, i & 3
            wt = None
            if i % 2 == 0:
                wt = [("V", V_VF, i + 1)]
            pvm.append((self.mfma(V_O + 16 * db, V_VF + 4 * i, V_P[0] + 4 * jj), wt))
        fac = [
            (f"v_min_f32 {vr(V_T)}, {vr(V_NMC)}, {vr(V_X+6)}", 1),
            (f"v_sub_f32 {vr(V_T+1)}, {vr(V_T)}, {vr(V_NMC)}", 1),
            (f"v_sub_f32 {vr(V_T+2)}, {vr(V_T)}, {vr(V_X+6)}", 1),
            (f"v_exp_f32 {vr(V_T+1)}, {vr(V_T+1)}", 2),
            (f"v_exp_f32 {vr(V_T+2)}, {vr(V_T+2)}", 2),
            (f"s_nop 0", 1),
            (f"v_mul_f32 {vr(V_T+3)}, {vr(V_T+1)}, {vr(V_L)}", 1),
            (f"v_fma_f32 {vr(V_T+3)}, {vr(V_T+2)}, {vr(V_X+7)}, {vr(V_T+3)}", 1),
            (f"v_rcp_f32 {vr(V_T+3)}, {vr(V_T+3)}", 2),
            (f"s_nop 0", 1),
            (f"v_mul_f32 {vr(V_X)}, {vr(V_T+1)}, {vr(V_T+3)}", 1),
        ]
        self.distribute(pvm, fac, {}, first_gap=1, last_gap=5)
        e("s_nop 15")
        for i in range(8):
            base = V_O + 32 + 4 * i
            for r in range(4):
                e(f"v_mul_f32 {vr(base+r)}, {vr(V_X)}, {vr(base+r)}")
            self.ds(f"ds_write_b128 {vr(V_X+8)}, {vr(base,4)} offset:{i*1024}", ("XO", i))
        for r in range(32):
            e(f"v_mul_f32 {vr(V_O+r)}, {vr(V_X)}, {vr(V_O+r)}")
        self.wait_ds_all()
        e("s_barrier")
        for i in range(8):
            self.ds(f"ds_read_b128 {vr(V_KF+4*i,4)}, {vr(V_X+9)} offset:{i*1024}", ("XI", i))
        for i in range(8):
            if i % 2 == 0:
                self.wait_ds([("XI", i + 1)])
            for r in range(4):
                e(f"v_add_f32 {vr(V_O+4*i+r)}, {vr(V_O+4*i+r)}, {vr(V_KF+4*i+r)}")
        self.pack_write([0, 1], None, V_S[0])
        self.wait_ds_all()
        for i in range(4):
            a = V_X + 10 + (i & 1)
            self.ds(f"ds_read_b128 {vr(V_KF+4*i,4)}, {vr(a)} offset:{i*2048}", ("R", i))
        for i in range(4):
            self.wait_ds([("R", i)])
            so = sr(S_T2) if i < 2 else sr(S_T3)
            oo = f" offset:{(i&1)*2048}" if (i & 1) else ""
            e(f"buffer_store_dwordx4 {vr(V_KF+4*i,4)}, {vr(V_X+12)}, {sr(S_O,4)}, {so} offen{oo}{o.stflags}")
        self.L("L_end")
        e("s_endpgm")
        self.emit_rare_blocks()
        self.lines += [
            '.section .rodata,"a"',
            ".p2align 6",
            f".amdhsa_kernel {KNAME}",
            "  .amdhsa_next_free_vgpr 256",
            "  .amdhsa_next_free_sgpr 64",
            "  .amdhsa_accum_offset 256",
            "  .amdhsa_group_segment_fixed_size 0",
            "  .amdhsa_kernarg_size 48",
            "  .amdhsa_user_sgpr_count 2",
            "  .amdhsa_user_sgpr_kernarg_segment_ptr 1",
            "  .amdhsa_system_sgpr_workgroup_id_x 1",
            ".end_amdhsa_kernel",
        ]
        return "\n".join(self.lines) + "\n"

    def lane_consts(self, half):
        e = self.e
        T = V_T
        e(f"v_and_b32 {vr(T)}, 31, {vr(V_LANE)}")
        e(f"v_lshrrev_b32 {vr(T+1)}, 5, {vr(V_LANE)}")
        e(f"v_and_b32 {vr(T+2)}, 15, {vr(V_LANE)}")
        e(f"v_xor_b32 {vr(T+2)}, {vr(T+2)}, {vr(T+1)}")
        e(f"v_lshlrev_b32 {vr(T+2)}, 4, {vr(T+2)}")
        e(f"v_lshl_add_u32 {vr(V_LANEK)}, {vr(T)}, 8, {vr(T+2)}")
        e(f"v_bfe_u32 {vr(T)}, {vr(V_LANE)}, 2, 2")
        e(f"v_lshl_add_u32 {vr(T+2)}, {vr(T+1)}, 2, {vr(T)}")
        e(f"v_lshlrev_b32 {vr(T+2)}, 8, {vr(T+2)}")
        e(f"v_lshl_add_u32 {vr(T+2)}, {vr(T)}, 6, {vr(T+2)}")
        e(f"v_bfe_u32 {vr(T)}, {vr(V_LANE)}, 4, 1")
        e(f"v_lshl_add_u32 {vr(T+2)}, {vr(T)}, 5, {vr(T+2)}")
        e(f"v_and_b32 {vr(T)}, 3, {vr(V_LANE)}")
        e(f"v_lshl_add_u32 {vr(V_LANEV)}, {vr(T)}, 3, {vr(T+2)}")
        if half:
            e(f"s_lshl_b32 {sr(S_T0)}, {sr(S_SUB)}, 13")
            e(f"v_add_u32 {vr(V_LANEK)}, {sr(S_T0)}, {vr(V_LANEK)}")
            e(f"s_lshl_b32 {sr(S_T1)}, {sr(S_SUB)}, 7")
            e(f"s_or_b32 {sr(S_T0)}, {sr(S_T0)}, {sr(S_T1)}")
            e(f"v_xor_b32 {vr(V_LANEV)}, {sr(S_T0)}, {vr(V_LANEV)}")


def main():
    ap = argparse.ArgumentParser()
    ap.add_argument("-o", default="standalone__gqa_softmax__near_ridge.s")
    ap.add_argument("--thr", type=float, default=8.0)
    ap.add_argument("--ldflags", default="")
    ap.add_argument("--stflags", default="")
    ap.add_argument("--rot", type=int, default=0)
    ap.add_argument("--rot_shift", type=int, default=0)
    ap.add_argument("--prio_full", type=int, default=0)
    ap.add_argument("--prio_half", type=int, default=0)
    ap.add_argument("--stamp", type=int, default=0)
    o = ap.parse_args()
    o.ldflags = (" " + o.ldflags.strip()) if o.ldflags.strip() else ""
    o.stflags = (" " + o.stflags.strip()) if o.stflags.strip() else ""
    g = G(o)
    open(o.o, "w").write(g.build())


if __name__ == "__main__":
    main()
```
